```python
import torch

def _softmax(x, axis=-1):
    return torch.softmax(x, dim=axis)
def _gelu(x):
    return torch.nn.functional.gelu(x, approximate="tanh")
def _silu(x):
    return torch.nn.functional.silu(x)
def _sigmoid(x):
    return torch.sigmoid(x)
def _layernorm(x, axis=-1, eps=1e-5):
    m = x.mean(dim=axis, keepdim=True)
    v = x.var(dim=axis, keepdim=True, unbiased=False)
    return (x - m) / torch.sqrt(v + eps)
def _scatter_add(tgt, idx, src, axis=0):
    return tgt.clone().index_add_(axis, idx, src)
def _segment_sum(src, seg, n):
    out = torch.zeros((n,) + src.shape[1:], dtype=src.dtype)
    return out.index_add_(0, seg, src)
def _pad(x, pw):
    flat = tuple(v for pair in reversed(pw) for v in pair)
    return torch.nn.functional.pad(x, flat)

kernel_name = 'sequential_preLN__mha_block__dense_activation_relu__prompt'

def setup_inputs():

    _w = (lambda a: (lambda t: t.to(torch.bfloat16) if t.is_floating_point() else t)(torch.as_tensor(a)))
    def _A_setup():
        B, S, D, H = 1, 2048, 512, 32
        return {
            "x": _w((lambda *s: torch.randn(*s, dtype=torch.bfloat16) * 0.05)(B, S, D)),
            "wqkv": _w((lambda *s: torch.randn(*s, dtype=torch.bfloat16) * 0.05)(D, 3 * D)),
            "wo": _w((lambda *s: torch.randn(*s, dtype=torch.bfloat16) * 0.05)(D, D)),
        }
    _A_in = _A_setup()

    def _B_setup():
        B, S, D, Dff = 1, 2048, 512, 1792
        return {
            "x": _w((lambda *s: torch.randn(*s, dtype=torch.bfloat16) * 0.05)(B, S, D)),
            "w1": _w((lambda *s: torch.randn(*s, dtype=torch.bfloat16) * 0.05)(D, Dff)),
            "w2": _w((lambda *s: torch.randn(*s, dtype=torch.bfloat16) * 0.05)(Dff, D)),
        }
    _B_in = _B_setup()

    return {
        "A_x": _A_in["x"],
        "A_wqkv": _A_in["wqkv"],
        "A_wo": _A_in["wo"],
        "B_x": _B_in["x"],
        "B_w1": _B_in["w1"],
        "B_w2": _B_in["w2"],
    }

def reference(A_x, A_wqkv, A_wo, B_x, B_w1, B_w2):
    def _A_ref(x, wqkv, wo):
        B, S, D = x.shape
        H = 32
        Dh = D // H
        qkv = (lambda x, *d: x.permute(*d))((x @ wqkv).reshape(B, S, 3, H, Dh), 2, 0, 3, 1, 4)
        q, k, v = qkv[0], qkv[1], qkv[2]
        scores = torch.einsum("bhqd,bhkd->bhqk", q, k) * (Dh ** -0.5)
        p = _softmax(scores, axis=-1)
        o = torch.einsum("bhqk,bhkd->bhqd", p, v)
        return (lambda x, *d: x.permute(*d))(o, 0, 2, 1, 3).reshape(B, S, D) @ wo

    def _B_ref(x, w1, w2):
        h = torch.einsum("bsd,df->bsf", x, w1)
        zero = torch.zeros_like(h)
        h = torch.maximum(h, zero)
        return torch.einsum("bsf,fd->bsd", h, w2)

    x = A_x
    h = x + _A_ref(_layernorm(x, axis=-1), A_wqkv, A_wo)
    h2 = h + _B_ref(_layernorm(h, axis=-1), B_w1, B_w2)
    return h2
```

```python
import re

TRANS = ("v_exp_", "v_log_", "v_rcp_", "v_rsq_", "v_sqrt_", "v_sin_", "v_cos_")
MFMA_PASSES = {"v_mfma_f32_32x32x16_bf16": 8, "v_mfma_f32_16x16x32_bf16": 4, "v_mfma_f32_4x4x4_16b_bf16": 2}
D_TO_VALU = {2: 5, 4: 8, 8: 12, 16: 20}
D_TO_C_OVL = {2: 4, 4: 6, 8: 10, 16: 18}
C_WAR = {2: 1, 4: 3, 8: 7, 16: 15}

_reg = re.compile(r"^(-|\|)?(abs\()?([vsa])(\d+|\[(\d+):(\d+)\])\)?\|?$")

def regs_of(op):
    op = op.strip()
    if op in ("vcc",): return {("s", 106), ("s", 107)}
    if op == "vcc_lo": return {("s", 106)}
    if op == "vcc_hi": return {("s", 107)}
    if op == "exec": return {("s", 126), ("s", 127)}
    if op == "m0": return {("s", 124)}
    m = _reg.match(op.replace("-|", "|"))
    if not m: return set()
    k = m.group(3)
    if m.group(5) is not None:
        return {(k, i) for i in range(int(m.group(5)), int(m.group(6)) + 1)}
    return {(k, int(m.group(4)))}

class Ins:
    __slots__ = ("text", "op", "ops", "wr", "rd", "kind", "ws", "A", "B", "C", "passes", "lds", "line")
    def __init__(self, text):
        self.text = text
        t = text.split(";")[0].strip()
        parts = t.split(None, 1)
        self.op = parts[0]
        rest = parts[1] if len(parts) > 1 else ""
        ops = [o.strip() for o in rest.split(",")] if rest else []
        mods = ""
        if ops:
            lp = ops[-1].split()
            ops[-1] = lp[0]
            mods = " ".join(lp[1:])
        self.ops = ops
        self.ws = 1
        self.wr = set(); self.rd = set(); self.A = self.B = self.C = set(); self.passes = 0; self.lds = False
        op = self.op
        R = [regs_of(o) for o in ops]
        U = lambda l: set().union(*l) if l else set()
        if op.startswith("v_mfma"):
            self.kind = "mfma"; self.passes = MFMA_PASSES[op]
            self.wr = R[0]; self.A = R[1]; self.B = R[2]; self.C = R[3]; self.rd = R[1] | R[2] | R[3]
        elif op.startswith("v_"):
            self.kind = "valu"
            if op.startswith("v_cmp"):
                self.wr = R[0]; self.rd = U(R[1:])
            elif op.startswith("v_permlane") and "swap" in op:
                self.wr = R[0] | R[1]; self.rd = R[0] | R[1]
            elif op.startswith("v_fmac") or op.startswith("v_dot2c") or "UNUSED_PRESERVE" in mods or op.startswith("v_writelane"):
                self.wr = R[0]; self.rd = U(R)
            elif op in ("v_add_co_u32", "v_sub_co_u32", "v_addc_co_u32"):
                self.wr = R[0] | R[1]; self.rd = U(R[2:])
            elif op == "v_nop":
                pass
            else:
                self.wr = R[0]; self.rd = U(R[1:])
        elif op.startswith("ds_"):
            self.kind = "ds"
            if op.startswith("ds_read") or op.startswith("ds_bpermute") or op.startswith("ds_swizzle"):
                self.wr = R[0]; self.rd = U(R[1:])
            else:
                self.rd = U(R)
        elif op.startswith("buffer_") or op.startswith("global_"):
            self.kind = "vmem"
            if op in ("buffer_inv", "buffer_wbl2"):
                pass
            elif " lds" in (" " + mods) or "load_lds" in op:
                self.lds = True; self.rd = U(R) | regs_of("m0")
            elif "load" in op:
                self.wr = R[0]; self.rd = U(R[1:])
            elif "atomic" in op and "sc0" in mods:
                self.wr = R[0]; self.rd = U(R)
            else:
                self.rd = U(R)
        elif op.startswith("s_load") or op.startswith("s_memtime") or op.startswith("s_memrealtime") or op.startswith("s_buffer_load"):
            self.kind = "smem"; self.wr = R[0]; self.rd = U(R[1:])
        elif op == "s_nop":
            self.kind = "nop"; self.ws = int(ops[0], 0) + 1
        elif op == "s_waitcnt":
            self.kind = "wait"
        elif op.startswith("s_"):
            self.kind = "salu"
            if op.startswith(("s_cmp", "s_bitcmp", "s_barrier", "s_branch", "s_cbranch", "s_sleep", "s_setprio", "s_endpgm", "s_setpc")):
                self.rd = U(R)
            elif "saveexec" in op:
                self.wr = R[0] | regs_of("exec"); self.rd = U(R[1:]) | regs_of("exec")
            else:
                self.wr = R[0]; self.rd = U(R[1:])
                if op in ("s_addk_i32", "s_mulk_i32"): self.rd |= R[0]
        else:
            raise ValueError("unknown op " + text)

class Kern:
    def __init__(self, name):
        self.name = name
        self.lines = []
        self.nlabel = 0
    def e(self, s, *a):
        if a: s = s % a
        for l in s.strip("\n").split("\n"):
            l = l.strip()
            if l: self.lines.append(l)
    def c(self, s):
        self.lines.append("; " + s)
    def lab(self, base="L"):
        self.nlabel += 1
        return "%s_%s_%d" % (base, self.name[:6], self.nlabel)
    def label(self, l):
        self.lines.append(l + ":")
    def text(self):
        out = []
        for l in self.lines:
            if l.endswith(":") or l.startswith("."): out.append(l)
            else: out.append("    " + l)
        return "\n".join(out) + "\n"
    def maxregs(self):
        mv = ms = ma = -1
        for l in self.lines:
            if l.startswith(";") or l.endswith(":") or l.startswith("."): continue
            i = Ins(l)
            for k, n in i.wr | i.rd:
                if k == "v": mv = max(mv, n)
                elif k == "a": ma = max(ma, n)
                elif k == "s" and n < 102: ms = max(ms, n)
        return mv, ms, ma
    def check(self, verbose=True):
        errs = []
        hist = []
        pos = 0
        vm = []
        lg = []
        for ln, l in enumerate(self.lines):
            if l.startswith("; @reset"):
                vm = []; lg = []; continue
            if l.startswith(";") or l.endswith(":") or l.startswith("."): continue
            i = Ins(l); i.line = ln
            vr = {r for r in i.rd if r[0] in "va"}; vw = {r for r in i.wr if r[0] in "va"}
            def need(p, n, why):
                d = pos - p[1] - p[0].ws + 0
                if d < n: errs.append("line %d: '%s' after '%s': %s needs %d, has %d" % (ln, l, p[0].text, why, n, d))
            for p in reversed(hist[-40:]):
                q = p[0]
                if q.kind == "valu":
                    qv = {r for r in q.wr if r[0] in "va"}; qs = {r for r in q.wr if r[0] == "s"}
                    if i.kind == "mfma" and qv & i.rd: need(p, 2, "VALU->MFMA")
                    if i.kind == "valu":
                        if q.op.startswith(TRANS) and not i.op.startswith(TRANS) and qv & i.rd: need(p, 1, "trans->VALU")
                        if i.op.startswith("v_permlane") and qv & i.rd: need(p, 2, "VALU->permlane")
                        if i.op.startswith(("v_readlane", "v_readfirstlane")) and qv & i.rd: need(p, 1, "VALU->readlane")
                        if "dpp" in l and qv & i.rd: need(p, 2, "VALU->DPP")
                        if qs & i.rd: need(p, 2, "VALU sgpr->VALU")
                        if ("sdwa" in q.text or "op_sel" in q.text) and qv & (i.rd | i.wr): need(p, 1, "opsel/sdwa->VALU")
                    if q.op.startswith(TRANS) and i.kind in ("ds", "vmem") and qv & i.rd: need(p, 1, "trans->mem")
                    if i.kind == "vmem" and qs & i.rd: need(p, 5, "VALU sgpr->VMEM")
                if q.kind == "mfma":
                    if i.kind == "mfma":
                        if q.wr & (i.A | i.B): need(p, D_TO_VALU[q.passes], "MFMA D->A/B")
                        if q.wr & i.C:
                            if q.wr == i.C and q.passes == i.passes: need(p, 2 if q.passes == 2 else 0, "MFMA chain")
                            else: need(p, D_TO_C_OVL[q.passes], "MFMA D->C overlap")
                        elif q.wr & i.wr: need(p, D_TO_C_OVL[q.passes], "MFMA WAW")
                    else:
                        if q.wr & (vr | vw): need(p, D_TO_VALU[q.passes], "MFMA D->use")
                        if i.kind == "valu" and (q.C & vw): need(p, C_WAR[q.passes], "MFMA C WAR")
                if q.kind == "salu" and ("s", 124) in q.wr and i.lds: need(p, 1, "M0->LDSDMA")
                if q.kind == "vmem" and "store" in q.op and ("x4" in q.op or "x3" in q.op):
                    data = regs_of(q.ops[0])
                    if data & vw and i.kind == "valu": need(p, 2, "store data WAR")
                    elif data & vw: need(p, 1, "store data WAR")
            if i.kind == "wait":
                m = re.search(r"vmcnt\((\d+)\)", l)
                if m:
                    n = int(m.group(1))
                    while len(vm) > n: vm.pop(0)
                m = re.search(r"lgkmcnt\((\d+)\)", l)
                if m:
                    n = int(m.group(1))
                    if n > 0 and any(s for _, s in lg): errs.append("line %d: counted lgkmcnt with SMEM outstanding" % ln)
                    while len(lg) > n: lg.pop(0)
            else:
                touched = i.rd | i.wr
                for d in vm:
                    if d & touched: errs.append("line %d: '%s' touches %s with VMEM load outstanding" % (ln, l, sorted(d & touched)[:2]))
                for d, _ in lg:
                    if d & touched: errs.append("line %d: '%s' touches %s with LGKM op outstanding" % (ln, l, sorted(d & touched)[:2]))
                if i.kind == "vmem":
                    vm.append(set(i.wr))
                    if len(vm) > 63: errs.append("line %d: >63 vmem outstanding" % ln)
                elif i.kind == "ds":
                    lg.append((set(i.wr), False))
                    if len(lg) > 15 and False: errs.append("line %d: >15 lgkm outstanding" % ln)
                elif i.kind == "smem": lg.append((set(i.wr), True))
            hist.append((i, pos))
            pos += i.ws
        if verbose:
            for e in errs[:50]: print("HAZARD[%s] %s" % (self.name, e))
        return errs

def vr(b, n=1):
    return "v%d" % b if n == 1 else "v[%d:%d]" % (b, b + n - 1)
def sr(b, n=1):
    return "s%d" % b if n == 1 else "s[%d:%d]" % (b, b + n - 1)

def srd(k, d, base, size):
    k.e("s_mov_b32 s%d, s%d" % (d, base))
    k.e("s_mov_b32 s%d, s%d" % (d + 1, base + 1))
    k.e("s_mov_b32 s%d, 0x%x" % (d + 2, size))
    k.e("s_mov_b32 s%d, 0x00020000" % (d + 3))

def kernel_text(k, extra_desc=""):
    mv, ms, ma = k.maxregs()
    nv = mv + 1
    acc = (nv + 3) // 4 * 4
    nfv = nv if ma < 0 else acc + ma + 1
    s = ".text\n.globl %s\n.p2align 8\n.type %s,@function\n%s:\n" % (k.name, k.name, k.name)
    s += k.text()
    s += "    s_endpgm\n"
    d = ".section .rodata,\"a\"\n.p2align 6\n.amdhsa_kernel %s\n" % k.name
    d += "  .amdhsa_next_free_vgpr %d\n  .amdhsa_next_free_sgpr %d\n  .amdhsa_accum_offset %d\n" % (nfv, min(102, ms + 1), acc)
    d += "  .amdhsa_group_segment_fixed_size 0\n  .amdhsa_kernarg_size 72\n  .amdhsa_user_sgpr_count 2\n  .amdhsa_user_sgpr_kernarg_segment_ptr 1\n  .amdhsa_system_sgpr_workgroup_id_x 1\n"
    d += extra_desc
    d += ".end_amdhsa_kernel\n"
    return s, d

class Stamps:
    def __init__(self, k, base=62, maxn=18, enabled=False, real=False):
        self.k = k; self.base = base; self.n = 0; self.maxn = maxn; self.on = enabled; self.names = []; self.real = real
    def stamp(self, name):
        if not self.on: return
        assert self.n < self.maxn
        self.k.e("%s s[%d:%d]" % ("s_memrealtime" if self.real else "s_memtime", self.base + 2 * self.n, self.base + 2 * self.n + 1))
        self.k.e("s_waitcnt lgkmcnt(0)")
        self.names.append(name); self.n += 1
    def dump(self, srd_ws, off, vt=1, waves=8):
        if not self.on: return
        k = self.k
        k.e("s_waitcnt vmcnt(0) lgkmcnt(0)")
        self.stamp("end")
        k.e("v_lshrrev_b32 v%d, 6, v0" % vt)
        k.e("s_mul_i32 s3, s2, %d" % waves)
        k.e("v_add_u32 v%d, s3, v%d" % (vt, vt))
        k.e("v_lshlrev_b32 v%d, 7, v%d" % (vt, vt))
        k.e("v_add_u32 v%d, 0x%x, v%d" % (vt, off, vt))
        for i in range(self.n):
            k.e("v_mov_b32 v%d, s%d" % (vt + 1, self.base + 2 * i))
            k.e("buffer_store_dword v%d, v%d, s[%d:%d], 0 offen offset:%d" % (vt + 1, vt, srd_ws, srd_ws + 3, 4 * i))
            k.e("s_nop 0")
```

```python
from asmlib import *
from layout import *
import struct
def f32(x): return "0x%08x" % struct.unpack("<I", struct.pack("<f", x))[0]

SLOT = 28672
NSLOT = 5
LOOK = 2
import os
ROTMASK = int(os.environ.get("ROTMASK", "7"))
SIDE_C = 7
SIDE_AFTER = 7
DMA_PER_GAP = 2
SIDE = SLOT * NSLOT
SIDEX = SIDE + 16384
K1_LDS = SIDEX + 4096
STF = "sc1"

class VM:
    def __init__(self): self.q = []
    def add(self, tag): self.q.append(tag)
    def n_after(self, tag):
        idx = max(i for i, t in enumerate(self.q) if t == tag)
        return len(self.q) - 1 - idx

def gen_k1(stamps=False):
    k = Kern("qkv_kernel")
    S = Stamps(k, enabled=bool(stamps), real=(stamps != "cyc"))
    END = "L_k1_end"
    vm = VM()
    sX, sWQ, sWS, sSD = 24, 28, 32, 36
    sW, sXb, sWb, sMx, sMw, sT, sT2, sRB, sCB, sTT = 22, 40, 41, 42, 43, 44, 45, 46, 47, 48
    sSo, sSd = 49, 50
    vOX = [1, 2]; vOW = 3; vOS = 4; vL = 10
    vXA = [[168 + 4 * s + i for i in range(4)] for s in range(3)]
    vWA = [180, 181, 182]
    aQ, aK, aV, aS, aSq, aC, vSel = 16, 32, 48, 64, 68, [72, 76, 80], 84
    fX = [88, 92]; fW = [[96 + 12 * b + 4 * t for t in range(3)] for b in range(2)]
    vSd = 120; vSu = 136
    k.e("s_cmp_ge_u32 s2, 256")
    k.e("s_cbranch_scc1 %s" % END)
    S.stamp("start")
    k.e("s_load_dwordx16 s[4:19], s[0:1], 0")
    k.e("s_load_dwordx2 s[20:21], s[0:1], 64")
    k.e("v_and_b32 v%d, 63, v0" % vL)
    k.e("v_lshrrev_b32 v11, 6, v0")
    k.e("s_and_b32 s%d, s2, 7" % sT)
    k.e("v_readfirstlane_b32 s%d, v11" % sW)
    k.e("s_lshr_b32 s%d, s2, 3" % sT2)
    k.e("s_lshr_b32 s%d, s%d, 1" % (sRB, sT))
    k.e("s_lshl_b32 s%d, s%d, 2" % (sRB, sRB))
    k.e("s_and_b32 s%d, s%d, 3" % (sCB, sT2))
    k.e("s_add_u32 s%d, s%d, s%d" % (sRB, sRB, sCB))
    k.e("s_and_b32 s%d, s%d, 1" % (sCB, sT))
    k.e("s_lshl_b32 s%d, s%d, 3" % (sCB, sCB))
    k.e("s_lshr_b32 s%d, s%d, 2" % (sT2, sT2))
    k.e("s_add_u32 s%d, s%d, s%d" % (sCB, sCB, sT2))
    k.e("s_lshl_b32 s%d, s%d, 2" % (sTT, sRB))
    k.e("s_add_u32 s%d, s%d, s%d" % (sTT, sTT, sW))
    k.e("s_lshl_b32 s%d, s%d, 15" % (sXb, sTT))
    k.e("s_mul_i32 s%d, s%d, %d" % (sWb, sW, 16 * 3072))
    k.e("s_lshl_b32 s%d, s%d, 6" % (sT, sCB))
    k.e("s_add_u32 s%d, s%d, s%d" % (sWb, sWb, sT))
    k.e("s_lshl_b32 s%d, s%d, 12" % (sMx, sW))
    k.e("s_lshl_b32 s%d, s%d, 10" % (sMw, sW))
    k.e("s_add_u32 s%d, s%d, 16384" % (sMw, sMw))
    k.e("v_lshrrev_b32 v11, 3, v%d" % vL)
    k.e("v_lshlrev_b32 v11, 10, v11")
    k.e("v_and_b32 v12, 7, v%d" % vL)
    k.e("v_lshrrev_b32 v13, 4, v%d" % vL)
    k.e("v_xor_b32 v12, v12, v13")
    k.e("v_lshl_add_u32 v%d, v12, 4, v11" % vOX[0])
    k.e("v_xor_b32 v%d, 64, v%d" % (vOX[1], vOX[0]))
    k.e("v_lshrrev_b32 v11, 2, v%d" % vL)
    k.e("v_mul_u32_u24 v11, 3072, v11")
    k.e("v_and_b32 v12, 3, v%d" % vL)
    k.e("v_lshl_add_u32 v%d, v12, 4, v11" % vOW)
    LB, LC, LJ = "L_k1_sideB", "L_k1_sideC", "L_k1_sideJ"
    k.e("s_waitcnt lgkmcnt(0)")
    srd(k, sX, 4, 2048 * 1024)
    srd(k, sWQ, 6, 512 * 3072)
    srd(k, sWS, 20, WS_SIZE)
    k.e("s_cmp_ge_u32 s2, 112")
    k.e("s_cbranch_scc1 %s" % LB)
    srd(k, sSD, 12, 512 * 3584)
    k.e("v_lshrrev_b32 v11, 2, v%d" % vL)
    k.e("v_mul_u32_u24 v11, 3584, v11")
    k.e("v_and_b32 v12, 3, v%d" % vL)
    k.e("v_lshl_add_u32 v%d, v12, 4, v11" % vOS)
    k.e("s_lshl_b32 s%d, s2, 2" % sT)
    k.e("s_add_u32 s%d, s%d, s%d" % (sT, sT, sW))
    k.e("s_lshl_b32 s%d, s%d, 12" % (sSd, sT))
    k.e("s_add_u32 s%d, s%d, 0x%x" % (sSd, sSd, W1F))
    k.e("s_and_b32 s%d, s%d, 7" % (sSo, sT))
    k.e("s_mul_i32 s%d, s%d, %d" % (sSo, sSo, 64 * 3584))
    k.e("s_lshr_b32 s%d, s%d, 3" % (sT2, sT))
    k.e("s_lshl_b32 s%d, s%d, 6" % (sT2, sT2))
    k.e("s_add_u32 s%d, s%d, s%d" % (sSo, sSo, sT2))
    k.e("s_mov_b32 s51, %d" % (16 * 3584))
    k.e("s_branch %s" % LJ)
    k.label(LB)
    k.e("v_lshrrev_b32 v11, 2, v%d" % vL)
    k.e("v_lshlrev_b32 v11, 10, v11")
    k.e("v_and_b32 v12, 3, v%d" % vL)
    k.e("v_lshl_add_u32 v%d, v12, 4, v11" % vOS)
    k.e("s_mov_b32 s51, %d" % (16 * 1024))
    k.e("s_cmp_ge_u32 s2, 224")
    k.e("s_cbranch_scc1 %s" % LC)
    srd(k, sSD, 14, 1792 * 1024)
    k.e("s_sub_u32 s%d, s2, 112" % sT)
    k.e("s_lshl_b32 s%d, s%d, 2" % (sT, sT))
    k.e("s_add_u32 s%d, s%d, s%d" % (sT, sT, sW))
    k.e("s_mul_i32 s%d, s%d, 2341" % (sT2, sT))
    k.e("s_lshr_b32 s%d, s%d, 16" % (sT2, sT2))
    k.e("s_lshl_b32 s%d, s%d, 12" % (sSd, sT))
    k.e("s_add_u32 s%d, s%d, 0x%x" % (sSd, sSd, W2F))
    k.e("s_mul_i32 s52, s%d, 28" % sT2)
    k.e("s_sub_u32 s%d, s%d, s52" % (sT, sT))
    k.e("s_lshl_b32 s%d, s%d, 16" % (sSo, sT))
    k.e("s_lshl_b32 s%d, s%d, 6" % (sT2, sT2))
    k.e("s_add_u32 s%d, s%d, s%d" % (sSo, sSo, sT2))
    k.e("s_branch %s" % LJ)
    k.label(LC)
    srd(k, sSD, 8, 512 * 1024)
    k.e("s_sub_u32 s%d, s2, 224" % sT)
    k.e("s_lshl_b32 s%d, s%d, 2" % (sT, sT))
    k.e("s_add_u32 s%d, s%d, s%d" % (sT, sT, sW))
    k.e("s_lshl_b32 s%d, s%d, 12" % (sSd, sT))
    k.e("s_add_u32 s%d, s%d, 0x%x" % (sSd, sSd, WOF))
    k.e("s_and_b32 s%d, s%d, 7" % (sSo, sT))
    k.e("s_lshl_b32 s%d, s%d, 16" % (sSo, sSo))
    k.e("s_lshr_b32 s%d, s%d, 3" % (sT2, sT))
    k.e("s_lshl_b32 s%d, s%d, 6" % (sT2, sT2))
    k.e("s_add_u32 s%d, s%d, s%d" % (sSo, sSo, sT2))
    k.label(LJ)

    sRot, sCX, sCW = 52, 53, 54
    k.e("s_lshl_b32 s%d, s%d, 1" % (sRot, sRB))
    k.e("s_add_u32 s%d, s%d, s%d" % (sRot, sRot, sCB))
    k.e("s_and_b32 s%d, s%d, %d" % (sRot, sRot, ROTMASK))
    def dma_groups(c):
        slot = c % NSLOT
        gs = []
        for i in range(4):
            g = []
            if i == 0:
                g.append("s_add_u32 s%d, s%d, %d" % (sCX, sRot, c))
                g.append("s_and_b32 s%d, s%d, 7" % (sCX, sCX))
                g.append("s_mul_i32 s%d, s%d, %d" % (sCW, sCX, 64 * 3072))
                g.append("s_add_u32 s%d, s%d, s%d" % (sCW, sCW, sWb))
                g.append("s_lshl_b32 s%d, s%d, 7" % (sCX, sCX))
                g.append("s_add_u32 s%d, s%d, s%d" % (sCX, sCX, sXb))
            g.append("s_add_u32 m0, s%d, %d" % (sMx, slot * SLOT + i * 1024))
            g.append("s_add_u32 s%d, s%d, %d" % (sT, sCX, i * 8192))
            g.append("buffer_load_dwordx4 v%d, s[%d:%d], s%d offen lds" % (vOX[i & 1], sX, sX + 3, sT))
            gs.append((g, ("c", c)))
            if i < 3:
                g = []
                g.append("s_add_u32 m0, s%d, %d" % (sMw, slot * SLOT + i * 4096))
                g.append("s_add_u32 s%d, s%d, %d" % (sT, sCW, i * 1024))
                g.append("buffer_load_dwordx4 v%d, s[%d:%d], s%d offen lds" % (vOW, sWQ, sWQ + 3, sT))
                gs.append((g, ("c", c)))
        return gs
    def emit_group(g):
        for l in g[0]: k.e(l)
        vm.add(g[1])
    S.stamp("karg")
    for g in dma_groups(0): emit_group(g)
    def side_groups():
        gs = []
        for i in range(4):
            g = ["s_add_u32 m0, s%d, %d" % (sMx, SIDE + i * 1024)]
            g.append("s_add_u32 s%d, s%d, s51" % (sSo, sSo) if i > 0 else "s_nop 0")
            g.append("buffer_load_dwordx4 v%d, s[%d:%d], s%d offen lds" % (vOS, sSD, sSD + 3, sSo))
            gs.append((g, "side"))
        return gs
    S.stamp("i0")
    k.e("v_and_b32 v11, 31, v%d" % vL)
    k.e("v_lshrrev_b32 v12, 5, v%d" % vL)
    k.e("v_bfe_u32 v13, v11, 1, 3")
    k.e("v_xor_b32 v12, v12, v13")
    k.e("v_lshlrev_b32 v11, 7, v11")
    k.e("v_add_u32 v11, s%d, v11" % sMx)
    k.e("v_lshl_add_u32 v%d, v12, 4, v11" % vXA[0][0])
    for ks in range(1, 4):
        k.e("v_xor_b32 v%d, %d, v%d" % (vXA[0][ks], ks * 32, vXA[0][0]))
    for s in (1, 2):
        for ks in range(4):
            k.e("v_add_u32 v%d, %d, v%d" % (vXA[s][ks], s * 2 * SLOT, vXA[0][ks]))
    k.e("v_lshrrev_b32 v11, 5, v%d" % vL)
    k.e("v_bfe_u32 v12, v%d, 2, 2" % vL)
    k.e("v_lshl_add_u32 v11, v11, 3, v12")
    k.e("v_lshlrev_b32 v11, 6, v11")
    k.e("v_bfe_u32 v12, v%d, 4, 1" % vL)
    k.e("v_lshl_add_u32 v11, v12, 5, v11")
    k.e("v_and_b32 v12, 3, v%d" % vL)
    k.e("v_lshl_add_u32 v11, v12, 3, v11")
    k.e("v_add_u32 v%d, 16384, v11" % vWA[0])
    k.e("v_add_u32 v%d, %d, v11" % (vWA[1], 16384 + 2 * SLOT))
    k.e("v_add_u32 v%d, %d, v11" % (vWA[2], 16384 + 4 * SLOT))
    k.e("v_lshrrev_b32 v11, 4, v%d" % vL)
    k.e("v_lshrrev_b32 v12, 2, v%d" % vL)
    k.e("v_xor_b32 v11, v11, v12")
    k.e("v_and_b32 v11, 1, v11")
    k.e("v_subrev_u32 v11, 1, v11")
    k.e("v_and_b32 v%d, 0x3f803f80, v11" % vSel)
    for i in range(1, 4): k.e("v_mov_b32 v%d, v%d" % (vSel + i, vSel))
    for r in list(range(aQ, aV + 16)) + list(range(aS, aC[2] + 4)):
        k.e("v_mov_b32 v%d, 0" % r)

    vSA, vSO = 183, 184
    k.e("v_lshrrev_b32 v11, 5, v%d" % vL)
    k.e("v_bfe_u32 v12, v%d, 2, 2" % vL)
    k.e("v_lshl_add_u32 v11, v11, 2, v12")
    k.e("v_lshlrev_b32 v11, 6, v11")
    k.e("v_bfe_u32 v12, v%d, 4, 1" % vL)
    k.e("v_lshl_add_u32 v11, v12, 5, v11")
    k.e("v_and_b32 v12, 3, v%d" % vL)
    k.e("v_lshl_add_u32 v11, v12, 3, v11")
    k.e("v_add_u32 v11, s%d, v11" % sMx)
    k.e("v_add_u32 v%d, %d, v11" % (vSA, SIDE))
    k.e("v_lshlrev_b32 v%d, 4, v%d" % (vSO, vL))
    for c in range(1, LOOK):
        for g in dma_groups(c): emit_group(g)
    S.stamp("issued")

    def read_list(c, ks):
        slot = c % NSLOT; s_ = slot // 2; off = (slot % 2) * SLOT
        b = (c * 4 + ks) & 1
        l = ["ds_read_b128 v[%d:%d], v%d offset:%d" % (fX[b], fX[b] + 3, vXA[s_][ks], off)]
        for t in range(3):
            for h in range(2):
                l.append("ds_read_b64_tr_b16 v[%d:%d], v%d offset:%d" % (fW[b][t] + 2 * h, fW[b][t] + 2 * h + 1, vWA[s_], off + t * 4096 + ks * 1024 + h * 256))
        return l
    def mm(op, d, n, a, na, b, nb):
        k.e("%s v[%d:%d], v[%d:%d], v[%d:%d], v[%d:%d]" % (op, d, d + n - 1, a, a + na - 1, b, b + nb - 1, d, d + n - 1))
    M32, M16, M4 = "v_mfma_f32_32x32x16_bf16", "v_mfma_f32_16x16x32_bf16", "v_mfma_f32_4x4x4_16b_bf16"
    k.e("s_waitcnt vmcnt(%d)" % vm.n_after(("c", 0)))
    k.e("s_barrier")
    S.stamp("c0")
    for l in read_list(0, 0): k.e(l)
    queue = []
    for c2 in range(LOOK, 8):
        queue += [(g, max(0, c2 - NSLOT + 1)) for g in dma_groups(c2)]
        if c2 == SIDE_AFTER: queue += [(g, 0) for g in side_groups()]
    cur_bar = [0]
    for c in range(8):
        for ks in range(4):
            b = (c * 4 + ks) & 1
            last = (c == 7 and ks == 3)
            drained = False
            if ks == 3 and c < 7:
                k.e("s_waitcnt vmcnt(%d) lgkmcnt(0)" % vm.n_after(("c", c + 1)))
                k.e("s_barrier")
                if c in (0, 3, 4, 6): S.stamp("c%d" % (c + 1))
                drained = True
                cur_bar[0] = c + 1
            nxt = [] if last else (read_list(c, ks + 1) if ks < 3 else read_list(c + 1, 0))
            side_rd = side_st = False
            if c == SIDE_C and ks == 1: side_rd = True
            if c == SIDE_C and ks == 3: side_st = True
            def dma(n=1):
                for _ in range(n):
                    if queue and queue[0][1] <= cur_bar[0]: emit_group(queue.pop(0)[0])
            if not drained: k.e("s_waitcnt lgkmcnt(4)")
            mm(M32, aQ, 16, fW[b][0], 4, fX[b], 4)
            for l in nxt[0:3]: k.e(l)
            mm(M4, aSq, 4, fX[b], 2, fX[b], 2)
            if not drained: k.e("s_waitcnt lgkmcnt(%d)" % (5 if nxt else 2))
            mm(M32, aK, 16, fW[b][1], 4, fX[b], 4)
            for l in nxt[3:5]: k.e(l)
            dma(DMA_PER_GAP)
            mm(M16, aS, 4, vSel, 4, fX[b], 4)
            if not drained: k.e("s_waitcnt lgkmcnt(%d)" % (5 if nxt else 0))
            mm(M32, aV, 16, fX[b], 4, fW[b][2], 4)
            for l in nxt[5:7]: k.e(l)
            dma(DMA_PER_GAP)
            mm(M4, aSq, 4, fX[b] + 2, 2, fX[b] + 2, 2)
            L = k.lab("L_cs")
            k.e("s_cmp_lg_u32 s%d, %d" % (sW, ks))
            k.e("s_cbranch_scc1 %s" % L)
            for t in range(3): mm(M16, aC[t], 4, vSel, 4, fW[b][t], 4)
            k.label(L)
            if side_rd:
                k.e("s_waitcnt vmcnt(%d)" % vm.n_after("side"))
                for u in range(4):
                    for t in range(2):
                        k.e("ds_read_b64_tr_b16 v[%d:%d], v%d offset:%d" % (vSd + 4 * u + 2 * t, vSd + 4 * u + 2 * t + 1, vSA, u * 1024 + t * 512))
                k.e("s_waitcnt lgkmcnt(8)")
            if side_st:
                for u in range(4):
                    k.e("buffer_store_dwordx4 v[%d:%d], v%d, s[%d:%d], s%d offen offset:%d %s" % (vSd + 4 * u, vSd + 4 * u + 3, vSO, sWS, sWS + 3, sSd, u * 1024, STF))
                    vm.add("sidest")

    S.stamp("mainend")
    k.e("v_and_b32 v11, 31, v%d" % vL)
    k.e("v_lshlrev_b32 v12, 4, v11")
    k.e("v_add_u32 v12, %d, v12" % SIDEX)
    k.e("s_lshl_b32 s%d, s%d, 2" % (sT, sW))
    k.e("v_add_u32 v13, s%d, v12" % sT)
    k.e("s_nop 7")
    for t in range(3):
        k.e("ds_write_b32 v13, v%d offset:%d" % (aC[t], t * 512))
    k.e("v_and_b32 v14, 3, v%d" % vL)
    k.e("v_cmp_eq_u32 vcc, 1, v14")
    k.e("v_cmp_eq_u32 s[54:55], 2, v14")
    k.e("v_cmp_eq_u32 s[56:57], 3, v14")
    k.e("s_nop 1")
    k.e("v_cndmask_b32 v15, v%d, v%d, vcc" % (aSq, aSq + 1))
    k.e("v_cndmask_b32 v15, v15, v%d, s[54:55]" % (aSq + 2))
    k.e("v_cndmask_b32 v15, v15, v%d, s[56:57]" % (aSq + 3))
    k.e("v_mov_b32 v14, v15")
    k.e("s_waitcnt lgkmcnt(0)")
    k.e("s_barrier")
    k.e("v_permlane32_swap_b32 v14, v15")
    for t in range(3):
        k.e("ds_read_b128 v[%d:%d], v12 offset:%d" % (vSd + 4 * t, vSd + 4 * t + 3, t * 512))
    k.e("v_add_f32 v15, v14, v15")
    k.e("v_mul_f32 v5, %s, v%d" % (f32(1.0 / 512), aS))
    k.e("v_mul_f32 v15, %s, v15" % f32(1.0 / 512))
    k.e("v_fma_f32 v15, -v5, v5, v15")
    k.e("v_max_f32 v15, 0, v15")
    k.e("v_add_f32 v15, %s, v15" % f32(EPS))
    k.e("v_rsq_f32 v6, v15")
    k.e("s_lshl_b32 s%d, s%d, 9" % (sT, sW))
    k.e("s_add_u32 s%d, s%d, %d" % (sT, sT, SIDEX + 2048))
    k.e("v_mul_f32 v7, v5, v6")
    k.e("v_sub_f32 v7, 0, v7")
    k.e("v_lshlrev_b32 v13, 2, v11")
    k.e("v_add_u32 v13, s%d, v13" % sT)
    k.e("ds_write_b32 v13, v6 offset:0")
    k.e("ds_write_b32 v13, v7 offset:128")
    k.e("s_waitcnt lgkmcnt(2)")
    for t in range(3):
        k.e("v_add_f32 v%d, v%d, v%d" % (vSd + 4 * t, vSd + 4 * t, vSd + 4 * t + 1))
        k.e("v_add_f32 v%d, v%d, v%d" % (vSd + 4 * t + 2, vSd + 4 * t + 2, vSd + 4 * t + 3))
        k.e("v_add_f32 v%d, v%d, v%d" % (vSd + 4 * t, vSd + 4 * t, vSd + 4 * t + 2))
    k.e("ds_write_b32 v13, v%d offset:256" % (vSd))
    k.e("ds_write_b32 v13, v%d offset:384" % (vSd + 4))
    k.e("v_lshrrev_b32 v14, 5, v%d" % vL)
    k.e("v_lshlrev_b32 v14, 4, v14")
    k.e("v_add_u32 v14, s%d, v14" % sT)
    k.e("s_waitcnt lgkmcnt(0)")
    rA, rB, rCq, rCk = 188, 204, 220, 236
    for base, off in ((rCq, 256), (rCk, 384), (rA, 0), (rB, 128)):
        for q in range(4):
            k.e("ds_read_b128 v[%d:%d], v14 offset:%d" % (base + 4 * q, base + 4 * q + 3, off + q * 32))
    c = 0.25 * LOG2E
    k.e("v_mul_f32 v8, %s, v6" % f32(c))
    k.e("v_mul_f32 v9, %s, v7" % f32(c))
    k.e("v_lshlrev_b32 v11, 4, v%d" % vL)
    k.e("v_bfe_u32 v12, v%d, 4, 1" % vL)
    k.e("v_lshlrev_b32 v12, 16, v12")
    k.e("v_lshrrev_b32 v13, 5, v%d" % vL)
    k.e("v_lshl_add_u32 v12, v13, 8, v12")
    k.e("v_and_b32 v13, 15, v%d" % vL)
    k.e("v_lshl_add_u32 v12, v13, 4, v12")
    k.e("s_lshl_b32 s%d, s%d, 17" % (sT, sCB))
    k.e("s_lshl_b32 s%d, s%d, 10" % (sT2, sTT))
    k.e("s_add_u32 s%d, s%d, s%d" % (sT, sT, sT2))
    def fin(acc, cs, a, b, regwise):
        for r in range(16):
            if not regwise:
                k.e("v_mul_f32 v%d, v%d, v%d" % (cs + r, cs + r, b))
                k.e("v_fma_f32 v%d, v%d, v%d, v%d" % (acc + r, acc + r, a, cs + r))
            else:
                k.e("v_mul_f32 v%d, v%d, v%d" % (b + r, b + r, cs))
                k.e("v_fma_f32 v%d, v%d, v%d, v%d" % (acc + r, acc + r, a + r, b + r))
        for i in range(8):
            k.e("v_cvt_pk_bf16_f32 v%d, v%d, v%d" % (acc + i, acc + 2 * i, acc + 2 * i + 1))
    k.e("s_waitcnt lgkmcnt(12)")
    fin(aQ, rCq, 8, 9, False)
    k.e("s_add_u32 s58, s%d, 0x%x" % (sT, QF))
    k.e("s_add_u32 s59, s%d, 0x%x" % (sT, QF + 65536))
    k.e("buffer_store_dwordx4 v[%d:%d], v11, s[%d:%d], s58 offen %s" % (aQ, aQ + 3, sWS, sWS + 3, STF))
    k.e("buffer_store_dwordx4 v[%d:%d], v11, s[%d:%d], s59 offen %s" % (aQ + 4, aQ + 7, sWS, sWS + 3, STF))
    k.e("s_waitcnt lgkmcnt(8)")
    fin(aK, rCk, 6, 7, False)
    k.e("s_add_u32 s58, s%d, 0x%x" % (sT, KF))
    k.e("s_add_u32 s59, s%d, 0x%x" % (sT, KF + 65536))
    k.e("buffer_store_dwordx4 v[%d:%d], v11, s[%d:%d], s58 offen %s" % (aK, aK + 3, sWS, sWS + 3, STF))
    k.e("buffer_store_dwordx4 v[%d:%d], v11, s[%d:%d], s59 offen %s" % (aK + 4, aK + 7, sWS, sWS + 3, STF))
    k.e("s_waitcnt lgkmcnt(0)")
    fin(aV, vSd + 8, rA, rB, True)
    k.e("s_add_u32 s58, s%d, 0x%x" % (sT, VF))
    k.e("buffer_store_dwordx4 v[%d:%d], v12, s[%d:%d], s58 offen %s" % (aV, aV + 3, sWS, sWS + 3, STF))
    k.e("buffer_store_dwordx4 v[%d:%d], v12, s[%d:%d], s58 offen offset:512 %s" % (aV + 4, aV + 7, sWS, sWS + 3, STF))
    S.stamp("stored")
    S.dump(sWS, DBG1, vt=1, waves=4)
    k.stamps = S.names
    k.e("s_cmp_lg_u32 s%d, 0" % sW)
    k.e("s_cbranch_scc1 %s" % END)
    k.e("s_lshl_b32 s%d, s2, 8" % sT)
    k.e("s_add_u32 s%d, s%d, 0x%x" % (sT, sT, FLG))
    k.e("v_lshlrev_b32 v11, 2, v%d" % vL)
    k.e("v_mov_b32 v12, 0")
    k.e("buffer_store_dword v12, v11, s[%d:%d], s%d offen %s" % (sWS, sWS + 3, sT, STF))
    k.label(END)
    return k, (256, 256, K1_LDS)
```

```python
from asmlib import *
from layout import *
from k1 import f32, VM
import os

M32, M16 = "v_mfma_f32_32x32x16_bf16", "v_mfma_f32_16x16x32_bf16"
L_K, L_V = 0, 65536
L_OT, L_HT, L_EX, L_SM = 0, 65536, 131072, 147456
SM_CS, SM_MEAN, SM_RSTD = 0, 1024, 1280
K2_LDS = 163840
POLL_MAX = 400000
SC = "sc1"

def gen_k2(stamps=False):
    k = Kern("attn_ffn_kernel")
    S = Stamps(k, base=64, maxn=18, enabled=bool(stamps), real=(stamps != "cyc"))
    END = "L_k2_end"
    vm = VM()
    sWS, sX, sO = 24, 28, 32
    sW, sG, sM, sJ, sSG, sT, sT2, sT3 = 22, 36, 37, 38, 39, 40, 41, 42
    sKV, sMk, sW1, sMask, sFl = 43, 44, 45, 46, 48
    sFT, sTTp, sKH, sW2, sCnt = 49, 50, 51, 52, 53
    vLin, vKA, vVA = 1, 2, 3
    vXr = 8
    vQ, vK, vV, vO, vNM, vS = 12, [16, 20], [24, 32], 40, 56, [72, 88]
    vW = 128
    def mm(d, a, b, c, op=M32, n=16):
        cs = "0" if c is None else "v[%d:%d]" % (c, c + n - 1)
        k.e("%s v[%d:%d], v[%d:%d], v[%d:%d], %s" % (op, d, d + n - 1, a, a + 3, b, b + 3, cs))
    def ld(dst, voff, soff, tag, imm=0, sc=""):
        k.e("buffer_load_dwordx4 v[%d:%d], v%d, s[%d:%d], s%d offen%s %s" % (dst, dst + 3, voff, sWS, sWS + 3, soff, " offset:%d" % imm if imm else "", sc))
        vm.add(tag)

    k.e("s_cmp_ge_u32 s2, 256")
    k.e("s_cbranch_scc1 %s" % END)
    S.stamp("start")
    k.e("s_load_dwordx2 s[4:5], s[0:1], 0")
    k.e("s_load_dwordx2 s[16:17], s[0:1], 48")
    k.e("s_load_dwordx2 s[20:21], s[0:1], 64")
    k.e("v_lshrrev_b32 v4, 6, v0")
    k.e("v_and_b32 v5, 63, v0")
    k.e("v_readfirstlane_b32 s%d, v4" % sW)
    k.e("v_lshlrev_b32 v%d, 4, v5" % vLin)
    k.e("s_and_b32 s%d, s2, 7" % sG)
    k.e("s_lshr_b32 s%d, s2, 3" % sM)
    k.e("s_and_b32 s%d, s%d, 7" % (sJ, sM))
    k.e("s_lshr_b32 s%d, s%d, 3" % (sSG, sM))
    k.e("s_lshl_b32 s%d, s%d, 2" % (sT, sG))
    k.e("s_add_u32 s%d, s%d, s%d" % (sSG, sSG, sT))
    k.e("s_lshr_b32 s%d, s%d, 2" % (sFT, sW))
    k.e("s_bfe_u32 s%d, s%d, 0x10001" % (sTTp, sW))
    k.e("s_and_b32 s%d, s%d, 1" % (sKH, sW))
    k.e("s_lshl_b32 s%d, s%d, 16" % (sKV, sM))
    k.e("s_lshl_b32 s%d, s%d, 10" % (sMk, sW))
    k.e("s_add_u32 s%d, s%d, s%d" % (sKV, sKV, sMk))
    k.e("s_lshl_b32 s%d, s%d, 13" % (sT, sG))
    k.e("s_add_u32 s%d, s%d, s%d" % (sT, sT, sKV))
    k.e("s_mul_i32 s%d, s%d, 7" % (sW1, sJ))
    k.e("s_add_u32 s%d, s%d, s%d" % (sW1, sW1, sW))
    k.e("s_lshl_b32 s%d, s%d, 15" % (sW1, sW1))
    k.e("s_add_u32 s%d, s%d, 0x%x" % (sW1, sW1, W1F))
    k.e("s_mul_i32 s%d, s%d, 224" % (sW2, sJ))
    k.e("s_mul_i32 s%d, s%d, 14" % (sT2, sW))
    k.e("s_add_u32 s%d, s%d, s%d" % (sW2, sW2, sT2))
    k.e("s_lshl_b32 s%d, s%d, 10" % (sW2, sW2))
    k.e("s_add_u32 s%d, s%d, 0x%x" % (sW2, sW2, W2F))
    k.e("s_mov_b32 s%d, 0x0000ffff" % sMask)
    k.e("s_mov_b32 s%d, 0x0000ffff" % (sMask + 1))
    k.e("s_lshl_b32 s%d, s%d, 11" % (sFl, sSG))
    k.e("s_add_u32 s%d, s%d, 0x%x" % (sFl, sFl, FLG))
    k.e("s_waitcnt lgkmcnt(0)")
    srd(k, sWS, 20, WS_SIZE)
    srd(k, sX, 4, 2048 * 1024)
    srd(k, sO, 16, 2048 * 1024)
    S.stamp("karg")
    ld(vQ, vLin, sT, "q")
    def kv_pair(i):
        return [["s_add_u32 m0, s%d, %d" % (sMk, L_K + i * 8192), "s_add_u32 s%d, s%d, 0x%x" % (sT2, sKV, KF + i * 8192),
                 "buffer_load_dwordx4 v%d, s[%d:%d], s%d offen lds" % (vLin, sWS, sWS + 3, sT2)],
                ["s_add_u32 m0, s%d, %d" % (sMk, L_V + i * 8192), "s_add_u32 s%d, s%d, 0x%x" % (sT2, sKV, VF + i * 8192),
                 "buffer_load_dwordx4 v%d, s[%d:%d], s%d offen lds" % (vLin, sWS, sWS + 3, sT2)]]
    def emit_dma(g, tag):
        for l in g: k.e(l)
        vm.add(tag)
    PRO = 3
    for i in range(PRO):
        for g in kv_pair(i): emit_dma(g, ("kv", i))
    k.e("v_mov_b32 v%d, v%d" % (vKA, vLin))
    k.e("v_lshrrev_b32 v4, 5, v5")
    k.e("v_and_b32 v6, 15, v5")
    k.e("v_lshlrev_b32 v4, 8, v4")
    k.e("v_lshl_add_u32 v4, v6, 4, v4")
    k.e("v_add_u32 v%d, %d, v4" % (vVA, L_V))
    for r in range(vV[0], vV[1] + 8): k.e("v_mov_b32 v%d, 0x3f803f80" % r)
    for r in range(vO, vO + 16): k.e("v_mov_b32 v%d, 0" % r)
    k.e("v_and_b32 v4, 31, v5")
    k.e("v_lshlrev_b32 v4, 10, v4")
    k.e("v_lshrrev_b32 v6, 5, v5")
    k.e("v_lshl_add_u32 v7, v6, 3, v4")
    k.e("s_lshl_b32 s%d, s%d, 1" % (sT3, sSG))
    k.e("s_add_u32 s%d, s%d, s%d" % (sT3, sT3, sTTp))
    k.e("s_lshl_b32 s54, s%d, 15" % sT3)
    k.e("s_lshl_b32 s%d, s%d, 7" % (sT, sJ))
    k.e("s_add_u32 s54, s54, s%d" % sT)
    k.e("s_lshl_b32 s%d, s%d, 6" % (sT, sFT))
    k.e("s_add_u32 s54, s54, s%d" % sT)
    k.e("s_lshl_b32 s%d, s%d, 5" % (sT, sKH))
    k.e("s_add_u32 s54, s54, s%d" % sT)

    def rdK(t, b): return "ds_read_b128 v[%d:%d], v%d offset:%d" % (vK[b], vK[b] + 3, vKA, t * 1024)
    def rdV(t, b): return ["s_mov_b64 exec, s[%d:%d]" % (sMask, sMask + 1),
                           "ds_read_b128 v[%d:%d], v%d offset:%d" % (vV[b], vV[b] + 3, vVA, t * 1024),
                           "ds_read_b128 v[%d:%d], v%d offset:%d" % (vV[b] + 4, vV[b] + 7, vVA, t * 1024 + 512),
                           "s_mov_b64 exec, -1"]
    k.e("s_waitcnt vmcnt(%d)" % vm.n_after(("kv", 0)))
    k.e("s_barrier")
    S.stamp("kv0")
    k.e(rdK(0, 0)); k.e(rdK(1, 1))
    for l in rdV(0, 0): k.e(l)
    k.e("s_waitcnt lgkmcnt(3)")
    mm(vS[0], vK[0], vQ, None)
    k.e("s_nop 11")
    def rowmax(src, dst):
        k.e("v_max3_f32 v%d, v%d, v%d, v%d" % (dst, src, src + 1, src + 2))
        for r in range(3, 15, 2):
            k.e("v_max3_f32 v%d, v%d, v%d, v%d" % (dst, dst, src + r, src + r + 1))
        k.e("v_max_f32 v%d, v%d, v%d" % (dst, dst, src + 15))
    def setnm(src):
        k.e("v_mov_b32 v6, v%d" % src)
        k.e("s_nop 1")
        k.e("v_permlane32_swap_b32 v6, v%d" % src)
        k.e("v_max_f32 v6, v6, v%d" % src)
        for r in range(16): k.e("v_sub_f32 v%d, 0, v6" % (vNM + r))
        k.e("s_nop 1")
    rowmax(vS[0], 4)
    setnm(4)
    mm(vS[0], vK[0], vQ, vNM)
    k.e(rdK(2, 0))
    k.e("s_nop 10")

    sched = {}
    def at(t, g, tag): sched.setdefault(t, []).append((g, tag))
    for i in range(PRO, 8):
        g = kv_pair(i)
        at(2 * (i - PRO), g[0], ("kv", i)); at(2 * (i - PRO) + 1, g[1], ("kv", i))
    W0 = 11
    for i in range(32):
        t = W0 + (i * 3) // 2
        f1 = i * 1024
        f2 = ((i % 2) * 112 + (i // 2)) * 1024 if i < 28 else 0
        g = ["s_add_u32 s%d, s%d, %d" % (sT2, sW1, f1), "s_add_u32 s%d, s%d, %d" % (sT3, sW2, f2),
             "s_cmp_eq_u32 s%d, 7" % sW, "s_cselect_b32 s%d, s%d, s%d" % (sT2, sT3, sT2),
             "buffer_load_dwordx4 v[%d:%d], v%d, s[%d:%d], s%d offen" % (vW + 4 * i, vW + 4 * i + 3, vLin, sWS, sWS + 3, sT2)]
        at(t, g, "w1")
    at(61, ["buffer_load_dwordx2 v[%d:%d], v7, s[%d:%d], s54 offen" % (vXr, vXr + 1, sX, sX + 3)], "x")
    at(62, ["buffer_load_dwordx2 v[%d:%d], v7, s[%d:%d], s54 offen offset:16" % (vXr + 2, vXr + 3, sX, sX + 3)], "x")
    bars = {5: 2, 21: 5, 45: 7}

    for t in range(64):
        s, sn = vS[t & 1], vS[(t + 1) & 1]
        vb = vV[t & 1]; vp = vV[(t + 1) & 1]
        e = lambda r: k.e("v_exp_f32 v%d, v%d" % (s + r, s + r))
        cv = lambda i: k.e("v_cvt_pk_bf16_f32 v%d, v%d, v%d" % (s + (i if i < 4 else 4 + i), s + 2 * i, s + 2 * i + 1))
        if t in bars:
            k.e("s_waitcnt vmcnt(%d)" % vm.n_after(("kv", bars[t])))
            k.e("s_barrier")
            if t in (5, 21): S.stamp("t%d" % t)
        e(0); e(1)
        if t > 0: mm(vO, vp + 4, sn + 8, vO)
        if t + 1 < 64:
            for l in rdV(t + 1, (t + 1) & 1): k.e(l)
        e(2); e(3); e(4)
        for g, tag in sched.get(t, []): emit_dma(g, tag)
        e(5); e(6)
        if t + 1 < 64:
            k.e("s_waitcnt lgkmcnt(%d)" % (3 if t + 2 < 64 else 2))
            mm(sn, vK[(t + 1) & 1], vQ, vNM)
            if t + 3 < 64: k.e(rdK(t + 3, (t + 1) & 1))
        e(7); cv(0); cv(1); cv(2); cv(3); e(8); e(9)
        if t + 1 >= 64: k.e("s_waitcnt lgkmcnt(0)")
        mm(vO, vb, s, vO)
        for r in range(10, 16): e(r)
        cv(4); cv(5); cv(6); cv(7)
    k.e("s_nop 1")
    mm(vO, vV[1] + 4, vS[1] + 8, vO)
    S.stamp("attn")
    FIN, FB = "L_k2_fin", "L_k2_fb"
    k.e("s_nop 11")
    k.e("v_max3_f32 v4, |v%d|, |v%d|, |v%d|" % (vO, vO + 1, vO + 2))
    k.e("v_max3_f32 v4, v4, |v%d|, |v%d|" % (vO + 3, vO + 4))
    k.e("v_max3_f32 v4, v4, |v%d|, |v%d|" % (vO + 5, vO + 6))
    k.e("v_max3_f32 v4, v4, |v%d|, |v%d|" % (vO + 7, vO + 8))
    k.e("v_add_f32 v6, v%d, v%d" % (vO, vO + 1))
    for r in range(2, 9): k.e("v_add_f32 v6, v6, v%d" % (vO + r))
    k.e("v_mov_b32 v5, 0x%08x" % 0x71800000)
    k.e("v_cmp_nlt_f32 vcc, v4, v5")
    k.e("v_cmp_u_f32 s[56:57], v6, v6")
    k.e("s_or_b64 vcc, vcc, s[56:57]")
    k.e("s_cmp_eq_u64 vcc, 0")
    k.e("s_cbranch_scc1 %s" % FIN)
    k.label(FB)
    k.c("rare path: exact row max over all keys, then recompute")
    k.e("v_mov_b32 v4, 0xff800000")
    k.e("v_mov_b32 v104, v%d" % vKA)
    k.e("s_mov_b32 s%d, 64" % sCnt)
    k.label("L_k2_mx")
    k.e("ds_read_b128 v[%d:%d], v104" % (vK[0], vK[0] + 3))
    k.e("v_add_u32 v104, 1024, v104")
    k.e("s_waitcnt lgkmcnt(0)")
    mm(vS[0], vK[0], vQ, None)
    k.e("s_nop 11")
    rowmax(vS[0], 5)
    k.e("v_max_f32 v4, v4, v5")
    k.e("s_sub_u32 s%d, s%d, 1" % (sCnt, sCnt))
    k.e("s_cmp_lg_u32 s%d, 0" % sCnt)
    k.e("s_cbranch_scc1 L_k2_mx")
    setnm(4)
    for r in range(vO, vO + 16): k.e("v_mov_b32 v%d, 0" % r)
    k.e("v_mov_b32 v104, v%d" % vKA)
    k.e("v_mov_b32 v105, v%d" % vVA)
    k.e("s_mov_b32 s%d, 64" % sCnt)
    k.label("L_k2_rc")
    k.e("ds_read_b128 v[%d:%d], v104" % (vK[0], vK[0] + 3))
    k.e("s_mov_b64 exec, s[%d:%d]" % (sMask, sMask + 1))
    k.e("ds_read_b128 v[%d:%d], v105" % (vV[0], vV[0] + 3))
    k.e("ds_read_b128 v[%d:%d], v105 offset:512" % (vV[0] + 4, vV[0] + 7))
    k.e("s_mov_b64 exec, -1")
    k.e("v_add_u32 v104, 1024, v104")
    k.e("v_add_u32 v105, 1024, v105")
    k.e("s_waitcnt lgkmcnt(0)")
    mm(vS[0], vK[0], vQ, vNM)
    k.e("s_nop 11")
    for r in range(16): k.e("v_exp_f32 v%d, v%d" % (vS[0] + r, vS[0] + r))
    k.e("s_nop 0")
    for i in range(8): k.e("v_cvt_pk_bf16_f32 v%d, v%d, v%d" % (vS[0] + (i if i < 4 else 4 + i), vS[0] + 2 * i, vS[0] + 2 * i + 1))
    k.e("s_nop 1")
    mm(vO, vV[0], vS[0], vO)
    mm(vO, vV[0] + 4, vS[0] + 8, vO)
    k.e("s_sub_u32 s%d, s%d, 1" % (sCnt, sCnt))
    k.e("s_cmp_lg_u32 s%d, 0" % sCnt)
    k.e("s_cbranch_scc1 L_k2_rc")
    k.e("s_nop 11")
    k.label(FIN)
    k.e("v_rcp_f32 v4, v%d" % (vO + 8))
    k.e("s_lshl_b32 s%d, s%d, 3" % (sT, sG))
    k.e("s_add_u32 s%d, s%d, s%d" % (sT, sT, sW))
    for r in range(8): k.e("v_mul_f32 v%d, v%d, v4" % (vO + r, vO + r))
    for i in range(4): k.e("v_cvt_pk_bf16_f32 v%d, v%d, v%d" % (vO + i, vO + 2 * i, vO + 2 * i + 1))
    k.e("s_lshl_b32 s%d, s%d, 5" % (sT2, sT))
    k.e("s_add_u32 s%d, s%d, s%d" % (sT2, sT2, sM))
    k.e("s_lshl_b32 s%d, s%d, 10" % (sT2, sT2))
    k.e("s_add_u32 s%d, s%d, 0x%x" % (sT2, sT2, OF))
    k.e("buffer_store_dwordx4 v[%d:%d], v%d, s[%d:%d], s%d offen %s" % (vO, vO + 3, vLin, sWS, sWS + 3, sT2, SC))
    vm.add("ost")
    vWO = 56
    k.e("s_lshl_b32 s%d, s%d, 1" % (sT2, sJ))
    k.e("s_add_u32 s%d, s%d, s%d" % (sT2, sT2, sFT))
    k.e("s_lshl_b32 s%d, s%d, 1" % (sT2, sT2))
    k.e("s_add_u32 s%d, s%d, s%d" % (sT2, sT2, sKH))
    k.e("s_lshl_b32 s%d, s%d, 14" % (sT2, sT2))
    k.e("s_add_u32 s%d, s%d, 0x%x" % (sT2, sT2, WOF))
    k.e("s_lshr_b32 s%d, s%d, 1" % (sT3, sT))
    k.e("s_lshl_b32 s%d, s%d, 11" % (sT3, sT3))
    k.e("s_and_b32 s%d, s%d, 1" % (sT, sT))
    k.e("s_lshl_b32 s55, s%d, 1" % sM)
    k.e("s_add_u32 s%d, s%d, s55" % (sT, sT))
    k.e("s_lshl_b32 s%d, s%d, 2" % (sT, sT))
    k.e("s_add_u32 s%d, s%d, s%d" % (sT3, sT3, sT))
    k.e("s_add_u32 s55, s%d, 0x%x" % (sT3, FLG))
    k.e("v_mov_b32 v4, 0")
    k.e("v_mov_b32 v5, 1")
    def flag_store(soff):
        k.e("s_mov_b64 exec, 1")
        k.e("buffer_store_dword v5, v4, s[%d:%d], s%d offen %s" % (sWS, sWS + 3, soff, SC))
        k.e("s_mov_b64 exec, -1")
        vm.add("flag")
    k.e("s_waitcnt vmcnt(0)")
    flag_store(55)
    for i in range(16):
        if i % 4 == 0 and i: k.e("s_add_u32 s%d, s%d, 4096" % (sT2, sT2))
        ld(vWO + 4 * i, vLin, sT2, "wo", imm=(i % 4) * 1024)
    S.stamp("opub")
    vSel, vCs = 120, 124
    k.e("v_lshrrev_b32 v6, 4, v%d" % vLin)
    k.e("v_lshrrev_b32 v7, 4, v6")
    k.e("v_lshrrev_b32 v12, 2, v6")
    k.e("v_xor_b32 v7, v7, v12")
    k.e("v_and_b32 v7, 1, v7")
    k.e("v_subrev_u32 v7, 1, v7")
    k.e("v_and_b32 v%d, 0x3f803f80, v7" % vSel)
    for i in range(1, 4): k.e("v_mov_b32 v%d, v%d" % (vSel + i, vSel))
    k.e("s_nop 1")
    for i in range(32): mm(vCs, vSel, vW + 4 * i, None if i == 0 else vCs, op=M16, n=4)
    k.e("v_and_b32 v7, 31, v6")
    k.e("v_lshlrev_b32 v7, 2, v7")
    k.e("s_lshl_b32 s%d, s%d, 7" % (sT, sW))
    k.e("s_add_u32 s%d, s%d, %d" % (sT, sT, L_SM + SM_CS))
    k.e("v_add_u32 v7, s%d, v7" % sT)
    k.e("s_nop 4")
    k.e("ds_write_b32 v7, v%d" % vCs)
    k.e("s_barrier")

    vPoll = 7
    def poll(off, mask_lo, mask_hi, perwave=False, name="p"):
        L, D = k.lab("L_poll"), k.lab("L_pdone")
        k.e("v_lshrrev_b32 v6, 2, v%d" % vLin)
        if perwave:
            k.e("s_lshl_b32 s%d, s%d, 5" % (sT, sW))
            k.e("s_add_u32 s%d, s%d, s%d" % (sT, sT, sFl))
        else:
            k.e("s_mov_b32 s%d, s%d" % (sT, sFl))
        k.e("s_mov_b32 s%d, 0" % sCnt)
        k.e("s_mov_b32 s56, 0x%x" % mask_lo)
        k.e("s_mov_b32 s57, 0x%x" % mask_hi)
        k.label(L)
        k.e("buffer_load_dword v%d, v6, s[%d:%d], s%d offen offset:%d %s" % (vPoll, sWS, sWS + 3, sT, off, SC))
        k.e("s_add_u32 s%d, s%d, 1" % (sCnt, sCnt))
        k.e("s_waitcnt vmcnt(0)")
        k.e("v_cmp_ne_u32 vcc, 0, v%d" % vPoll)
        k.e("s_cmp_gt_u32 s%d, %d" % (sCnt, POLL_MAX))
        k.e("s_cbranch_scc1 %s" % D)
        k.e("s_and_b64 vcc, vcc, s[56:57]")
        k.e("s_cmp_eq_u64 vcc, s[56:57]")
        k.e("s_cbranch_scc0 %s" % L)
        k.label(D)
        vm.q = []
    poll(0, 0xffffffff, 0xffffffff)
    S.stamp("opoll")
    k.e("s_lshl_b32 s%d, s%d, 16" % (sT, sSG))
    k.e("s_lshl_b32 s%d, s%d, 12" % (sT2, sW))
    k.e("s_add_u32 s%d, s%d, s%d" % (sT, sT, sT2))
    def tile_dma(base, ldsbase):
        for tt in range(2):
            k.e("s_add_u32 m0, s%d, %d" % (sT2, ldsbase + tt * 32768))
            k.e("s_add_u32 s%d, s%d, 0x%x" % (sT3, sT, base + tt * 32768))
            for i in range(4):
                k.e("buffer_load_dwordx4 v%d, s[%d:%d], s%d offen offset:%d %s lds" % (vLin, sWS, sWS + 3, sT3, i * 1024, SC))
                vm.add("tile")
    tile_dma(OF, L_OT)
    k.e("s_lshl_b32 s%d, s%d, 1" % (sT3, sTTp))
    k.e("s_add_u32 s%d, s%d, s%d" % (sT3, sT3, sKH))
    k.e("s_lshl_b32 s%d, s%d, 14" % (sT3, sT3))
    k.e("v_add_u32 v2, s%d, v%d" % (sT3, vLin))
    k.e("s_waitcnt vmcnt(0)")
    k.e("s_barrier")
    S.stamp("otile")
    aP, fB = 24, [12, 16, 20, 40, 44, 48]
    NB = len(fB)
    for i in range(min(NB - 1, 16)):
        k.e("ds_read_b128 v[%d:%d], v2 offset:%d" % (fB[i], fB[i] + 3, L_OT + i * 1024))
    for i in range(16):
        nxt = i + NB - 1
        k.e("s_waitcnt lgkmcnt(%d)" % (min(16, nxt) - 1 - i))
        mm(aP, vWO + 4 * i, fB[i % NB], None if i == 0 else aP)
        if nxt < 16: k.e("ds_read_b128 v[%d:%d], v2 offset:%d" % (fB[nxt % NB], fB[nxt % NB] + 3, L_OT + nxt * 1024))
    k.e("s_lshl_b32 s%d, s%d, 11" % (sT, sW))
    k.e("s_add_u32 s%d, s%d, %d" % (sT, sT, L_EX))
    k.e("v_add_u32 v2, s%d, v%d" % (sT, vLin))
    k.e("v_xor_b32 v3, 2048, v2")
    k.e("s_cmp_eq_u32 s%d, 0" % sKH)
    k.e("s_cselect_b64 vcc, -1, 0")
    k.e("s_nop 7")
    for r in range(8):
        k.e("v_cndmask_b32 v%d, v%d, v%d, vcc" % (40 + r, aP + r, aP + 8 + r))
        k.e("v_cndmask_b32 v%d, v%d, v%d, vcc" % (48 + r, aP + 8 + r, aP + r))
    k.e("ds_write_b128 v2, v[40:43]")
    k.e("ds_write_b128 v2, v[44:47] offset:1024")
    for i in range(4):
        k.e("v_lshlrev_b32 v%d, 16, v%d" % (12 + 2 * i, vXr + i))
        k.e("v_and_b32 v%d, 0xffff0000, v%d" % (13 + 2 * i, vXr + i))
    for r in range(8): k.e("v_add_f32 v%d, v%d, v%d" % (48 + r, 48 + r, 12 + r))
    k.e("s_waitcnt lgkmcnt(0)")
    k.e("s_barrier")
    k.e("ds_read_b128 v[40:43], v3")
    k.e("ds_read_b128 v[44:47], v3 offset:1024")
    k.e("s_lshl_b32 s%d, s%d, 1" % (sT, sSG))
    k.e("s_add_u32 s%d, s%d, s%d" % (sT, sT, sTTp))
    k.e("s_lshl_b32 s%d, s%d, 5" % (sT, sT))
    k.e("s_lshl_b32 s%d, s%d, 2" % (sT2, sJ))
    k.e("s_add_u32 s%d, s%d, s%d" % (sT, sT, sT2))
    k.e("s_lshl_b32 s%d, s%d, 1" % (sT2, sFT))
    k.e("s_add_u32 s%d, s%d, s%d" % (sT, sT, sT2))
    k.e("s_add_u32 s%d, s%d, s%d" % (sT, sT, sKH))
    k.e("s_lshl_b32 s%d, s%d, 10" % (sT2, sT))
    k.e("s_add_u32 s%d, s%d, 0x%x" % (sT2, sT2, HF))
    k.e("s_lshl_b32 s%d, s%d, 8" % (sT3, sT))
    k.e("s_add_u32 s%d, s%d, 0x%x" % (sT3, sT3, ST))
    k.e("s_waitcnt lgkmcnt(0)")
    for r in range(8): k.e("v_add_f32 v%d, v%d, v%d" % (48 + r, 48 + r, 40 + r))
    for i in range(4): k.e("v_cvt_pk_bf16_f32 v%d, v%d, v%d" % (vXr + i, 48 + 2 * i, 49 + 2 * i))
    k.e("buffer_store_dwordx4 v[%d:%d], v%d, s[%d:%d], s%d offen %s" % (vXr, vXr + 3, vLin, sWS, sWS + 3, sT2, SC))
    for i in range(4):
        k.e("v_lshlrev_b32 v%d, 16, v%d" % (48 + 2 * i, vXr + i))
        k.e("v_and_b32 v%d, 0xffff0000, v%d" % (49 + 2 * i, vXr + i))
    k.e("v_add_f32 v40, v48, v49")
    k.e("v_mul_f32 v41, v48, v48")
    k.e("v_fmac_f32 v41, v49, v49")
    for r in range(2, 8):
        k.e("v_add_f32 v40, v40, v%d" % (48 + r))
        k.e("v_fmac_f32 v41, v%d, v%d" % (48 + r, 48 + r))
    k.e("v_mov_b32 v42, v40")
    k.e("v_mov_b32 v43, v41")
    k.e("v_lshrrev_b32 v6, 1, v%d" % vLin)
    k.e("s_nop 0")
    k.e("v_permlane32_swap_b32 v40, v42")
    k.e("v_permlane32_swap_b32 v41, v43")
    k.e("v_add_f32 v40, v40, v42")
    k.e("v_add_f32 v41, v41, v43")
    k.e("s_mov_b32 exec_hi, 0")
    k.e("buffer_store_dwordx2 v[40:41], v6, s[%d:%d], s%d offen %s" % (sWS, sWS + 3, sT3, SC))
    k.e("s_mov_b32 exec_hi, -1")
    k.e("s_lshl_b32 s%d, s%d, 3" % (sT, sJ))
    k.e("s_add_u32 s%d, s%d, s%d" % (sT, sT, sW))
    k.e("s_lshl_b32 s%d, s%d, 2" % (sT, sT))
    k.e("s_add_u32 s58, s%d, s%d" % (sT, sFl))
    k.e("s_add_u32 s55, s58, 256")
    k.e("s_waitcnt vmcnt(0)")
    flag_store(55)
    S.stamp("hpub")
    poll(256, 0xffffffff, 0xffffffff)
    S.stamp("hpoll")
    k.e("s_lshl_b32 s%d, s%d, 16" % (sT, sSG))
    k.e("s_lshl_b32 s%d, s%d, 12" % (sT2, sW))
    k.e("s_add_u32 s%d, s%d, s%d" % (sT, sT, sT2))
    tile_dma(HF, L_HT)
    W7, W7J, P4E = "L_k2_w7", "L_k2_w7j", "L_k2_p4e"
    k.e("s_cmp_eq_u32 s%d, 7" % sW)
    k.e("s_cbranch_scc1 %s" % W7)
    k.e("v_add_u32 v2, %d, v%d" % (L_HT, vLin))
    k.e("s_waitcnt vmcnt(0)")
    k.e("s_barrier")
    S.stamp("htile")
    aU = [24, 40]; fH = [[56 + 8 * b + 4 * tt for tt in range(2)] for b in range(4)]
    def rdH(ks):
        for tt in range(2):
            b = fH[ks % 4][tt]
            k.e("ds_read_b128 v[%d:%d], v2 offset:%d" % (b, b + 3, tt * 32768 + ks * 1024))
    for ks in range(3): rdH(ks)
    for ks in range(32):
        n_out = 2 * (min(32, ks + 3) - ks - 1)
        k.e("s_waitcnt lgkmcnt(%d)" % (n_out + 1))
        mm(aU[0], vW + 4 * ks, fH[ks % 4][0], None if ks == 0 else aU[0])
        if ks + 3 < 32: rdH(ks + 3); n_out += 2
        k.e("s_waitcnt lgkmcnt(%d)" % n_out)
        mm(aU[1], vW + 4 * ks, fH[ks % 4][1], None if ks == 0 else aU[1])
        if ks < 28:
            k.e("s_add_u32 s%d, s%d, %d" % (sT2, sW2, ((ks % 2) * 112 + ks // 2) * 1024))
            ld(vW + 4 * ks, vLin, sT2, "w2")
    k.e("v_lshrrev_b32 v6, 9, v%d" % vLin)
    k.e("v_lshlrev_b32 v6, 4, v6")
    k.e("s_lshl_b32 s%d, s%d, 7" % (sT, sW))
    k.e("s_add_u32 s%d, s%d, %d" % (sT, sT, L_SM + SM_CS))
    k.e("v_add_u32 v6, s%d, v6" % sT)
    for q in range(4): k.e("ds_read_b128 v[%d:%d], v6 offset:%d" % (56 + 4 * q, 59 + 4 * q, q * 32))
    k.e("s_branch %s" % W7J)
    k.label(W7)
    k.c("@reset")
    k.c("wave 7: LayerNorm statistics of the 64 rows from the per-fragment partials")
    k.e("v_lshrrev_b32 v6, 4, v%d" % vLin)
    k.e("v_and_b32 v2, 31, v6")
    k.e("v_lshlrev_b32 v2, 3, v2")
    k.e("v_lshrrev_b32 v6, 5, v6")
    k.e("v_lshl_add_u32 v2, v6, 12, v2")
    k.e("s_lshl_b32 s%d, s%d, 14" % (sT, sSG))
    k.e("s_add_u32 s%d, s%d, 0x%x" % (sT, sT, ST))
    for tt in range(2):
        for i in range(16):
            k.e("buffer_load_dwordx2 v[%d:%d], v2, s[%d:%d], s%d offen offset:%d %s" % (24 + 32 * tt + 2 * i, 25 + 32 * tt + 2 * i, sWS, sWS + 3, sT, i * 256, SC))
        if tt == 0: k.e("s_add_u32 s%d, s%d, 8192" % (sT, sT))
    k.e("s_waitcnt vmcnt(32)")
    k.e("s_barrier")
    k.e("s_waitcnt vmcnt(0)")
    k.e("v_lshrrev_b32 v6, 4, v%d" % vLin)
    k.e("v_and_b32 v6, 31, v6")
    k.e("v_lshlrev_b32 v6, 2, v6")
    for tt in range(2):
        b = 24 + 32 * tt
        for st in (16, 8, 4, 2):
            for i in range(st): k.e("v_add_f32 v%d, v%d, v%d" % (b + i, b + i, b + i + st))
        k.e("v_mov_b32 v%d, v%d" % (b + 2, b))
        k.e("v_mov_b32 v%d, v%d" % (b + 3, b + 1))
        k.e("s_nop 1")
        k.e("v_permlane32_swap_b32 v%d, v%d" % (b, b + 2))
        k.e("v_permlane32_swap_b32 v%d, v%d" % (b + 1, b + 3))
        k.e("v_add_f32 v%d, v%d, v%d" % (b, b, b + 2))
        k.e("v_add_f32 v%d, v%d, v%d" % (b + 1, b + 1, b + 3))
        k.e("v_mul_f32 v%d, %s, v%d" % (b, f32(1.0 / 512), b))
        k.e("v_mul_f32 v%d, %s, v%d" % (b + 1, f32(1.0 / 512), b + 1))
        k.e("v_fma_f32 v%d, -v%d, v%d, v%d" % (b + 1, b, b, b + 1))
        k.e("v_max_f32 v%d, 0, v%d" % (b + 1, b + 1))
        k.e("v_add_f32 v%d, %s, v%d" % (b + 1, f32(EPS), b + 1))
        k.e("v_rsq_f32 v%d, v%d" % (b + 1, b + 1))
        k.e("v_add_u32 v7, %d, v6" % (L_SM + tt * 128))
        k.e("ds_write_b32 v7, v%d offset:%d" % (b, SM_MEAN))
        k.e("ds_write_b32 v7, v%d offset:%d" % (b + 1, SM_RSTD))
    k.label(W7J)
    k.e("s_waitcnt lgkmcnt(0)")
    k.e("s_barrier")
    S.stamp("p4mm")
    vRs = 122
    k.e("v_lshrrev_b32 v6, 4, v%d" % vLin)
    k.e("v_and_b32 v6, 31, v6")
    k.e("v_lshlrev_b32 v6, 2, v6")
    k.e("v_add_u32 v6, %d, v6" % L_SM)
    k.e("s_lshl_b32 s%d, s%d, 7" % (sT, sTTp))
    k.e("v_add_u32 v7, s%d, v6" % sT)
    k.e("ds_read_b32 v120, v6 offset:%d" % SM_MEAN)
    k.e("ds_read_b32 v121, v6 offset:%d" % (SM_MEAN + 128))
    k.e("ds_read_b32 v%d, v7 offset:%d" % (vRs, SM_RSTD))
    k.e("s_cmp_eq_u32 s%d, 7" % sW)
    k.e("s_cbranch_scc1 %s" % P4E)
    k.e("s_mul_i32 s%d, s%d, 224" % (sT, sSG))
    k.e("s_mul_i32 s%d, s%d, 14" % (sT2, sJ))
    k.e("s_add_u32 s%d, s%d, s%d" % (sT, sT, sT2))
    k.e("s_lshl_b32 s%d, s%d, 1" % (sT2, sW))
    k.e("s_add_u32 s%d, s%d, s%d" % (sT, sT, sT2))
    k.e("s_lshl_b32 s%d, s%d, 10" % (sT, sT))
    k.e("s_add_u32 s%d, s%d, 0x%x" % (sT, sT, UF))
    k.e("s_add_u32 s%d, s%d, %d" % (sT2, sT, 112 * 1024))
    k.e("v_mov_b32 v3, 0")
    k.e("s_waitcnt lgkmcnt(0)")
    for tt in range(2):
        a = aU[tt]
        for r in range(16): k.e("v_fma_f32 v%d, -v%d, v%d, v%d" % (a + r, 120 + tt, 56 + r, a + r))
        for i in range(8): k.e("v_cvt_pk_bf16_f32 v%d, v%d, v%d" % (a + i, a + 2 * i, a + 2 * i + 1))
        for i in range(8): k.e("v_pk_max_i16 v%d, v%d, v3" % (a + i, a + i))
        for rh in range(2):
            k.e("buffer_store_dwordx4 v[%d:%d], v%d, s[%d:%d], s%d offen offset:%d %s" % (a + 4 * rh, a + 4 * rh + 3, vLin, sWS, sWS + 3, sT if tt == 0 else sT2, rh * 1024, SC))
    k.e("s_add_u32 s55, s58, 512")
    k.e("s_waitcnt vmcnt(0)")
    flag_store(55)
    k.label(P4E)
    k.e("s_waitcnt lgkmcnt(0)")
    S.stamp("upub")
    poll(512, 0x7f, 0, perwave=True)
    S.stamp("upoll")
    k.e("s_mul_i32 s%d, s%d, 224" % (sT, sSG))
    k.e("s_mul_i32 s%d, s%d, 14" % (sT2, sW))
    k.e("s_add_u32 s%d, s%d, s%d" % (sT, sT, sT2))
    k.e("s_lshl_b32 s%d, s%d, 10" % (sT, sT))
    k.e("s_add_u32 s%d, s%d, 0x%x" % (sT, sT, UF))
    ring = [12 + 4 * i for i in range(11)] + [240 + 4 * i for i in range(4)]
    ring = ring[:14]
    aF = [[56, 72], [88, 104]]
    def ldU(f):
        i, tt = f // 2, f % 2
        k.e("s_add_u32 s%d, s%d, %d" % (sT2, sT, tt * 112 * 1024 + i * 1024))
        ld(ring[f % len(ring)], vLin, sT2, ("u", f), sc=SC)
    NR = len(ring)
    for f in range(NR): ldU(f)
    for f in range(28):
        i, tt = f // 2, f % 2
        k.e("s_waitcnt vmcnt(%d)" % vm.n_after(("u", f)))
        for ft in range(2):
            mm(aF[ft][tt], vW + 4 * (2 * i + ft), ring[f % NR], None if i == 0 else aF[ft][tt])
        if f + NR < 28: ldU(f + NR)
    S.stamp("p5mm")
    k.e("s_lshl_b32 s%d, s%d, 14" % (sT, sW))
    k.e("v_add_u32 v2, s%d, v%d" % (sT, vLin))
    k.e("s_lshl_b32 s%d, s%d, 11" % (sT, sW))
    k.e("v_add_u32 v3, s%d, v%d" % (sT, vLin))
    k.e("v_add_u32 v4, 65536, v3")
    k.e("s_nop 7")
    for ft in range(2):
        for tt in range(2):
            for q in range(4):
                a = aF[ft][tt] + 4 * q
                k.e("ds_write_b128 v2, v[%d:%d] offset:%d" % (a, a + 3, ((2 * ft + tt) * 4 + q) * 1024))
    for i in range(4):
        k.e("v_lshlrev_b32 v%d, 16, v%d" % (12 + 2 * i, vXr + i))
        k.e("v_and_b32 v%d, 0xffff0000, v%d" % (13 + 2 * i, vXr + i))
    k.e("v_lshrrev_b32 v6, 4, v%d" % vLin)
    k.e("v_and_b32 v7, 31, v6")
    k.e("v_lshlrev_b32 v7, 10, v7")
    k.e("v_lshrrev_b32 v6, 5, v6")
    k.e("v_lshl_add_u32 v7, v6, 4, v7")
    k.e("s_waitcnt lgkmcnt(0)")
    k.e("s_barrier")
    for p in range(8):
        for q in range(2):
            k.e("ds_read_b128 v[%d:%d], v%d offset:%d" % (56 + 8 * p + 4 * q, 59 + 8 * p + 4 * q, 3 if p < 4 else 4, (p % 4) * 16384 + q * 1024))
    for p in range(1, 8):
        k.e("s_waitcnt lgkmcnt(%d)" % (14 - 2 * p))
        for r in range(8): k.e("v_add_f32 v%d, v%d, v%d" % (56 + r, 56 + r, 56 + 8 * p + r))
    for r in range(8): k.e("v_fma_f32 v%d, v%d, v%d, v%d" % (12 + r, 56 + r, vRs, 12 + r))
    for i in range(4): k.e("v_cvt_pk_bf16_f32 v%d, v%d, v%d" % (20 + i, 12 + 2 * i, 13 + 2 * i))
    k.e("s_nop 1")
    k.e("v_permlane32_swap_b32 v20, v22")
    k.e("v_permlane32_swap_b32 v21, v23")
    k.e("buffer_store_dwordx4 v[20:23], v7, s[%d:%d], s54 offen" % (sO, sO + 3))
    S.dump(sWS, DBG2, vt=2, waves=8)
    k.stamps = S.names
    k.label(END)
    return k, (256, 512, K2_LDS)
```

```python
QF  = 0x000000
KF  = 0x200000
VF  = 0x400000
WOF = 0x600000
W1F = 0x700000
W2F = 0x900000
OF  = 0xB00000
HF  = 0xD00000
UF  = 0xF00000
ST  = 0x1600000
FLG = 0x1700000
DBG1 = 0x1800000
DBG2 = 0x1880000
WS_SIZE = 0x1900000
EPS = 1e-5
LOG2E = 1.4426950408889634
```

```python
import sys
from asmlib import *
from k1 import gen_k1
HEAD = open("sequential_preLN__mha_block__dense_activation_relu__prompt.s.ref").read().split("; Override launch")[0]
def build(gens, path, stamps=False):
    ks = [g(stamps=stamps) for g in gens]
    out = HEAD
    for k, (grid, block, lds) in ks:
        out += "; @launch kernel=%s grid=(%d,1,1) block=(%d,1,1) lds=%d\n" % (k.name, grid, block, lds)
    out += '.amdgcn_target "amdgcn-amd-amdhsa--gfx950"\n'
    descs = ""
    nerr = 0
    for k, _ in ks:
        nerr += len(k.check())
        t, d = kernel_text(k)
        out += t
        descs += d
        print("%s: %d lines, maxregs v/s/a = %s" % (k.name, len(k.lines), k.maxregs()))
    out += descs
    if stamps:
        import json
        json.dump({k.name: getattr(k, 'stamps', []) for k, _ in ks}, open(path + '.stamps.json', 'w'))
    open(path, "w").write(out)
    print("hazard errors:", nerr)
if __name__ == "__main__":
    gens = [gen_k1]
    try:
        from k2 import gen_k2
        gens.append(gen_k2)
    except ImportError:
        pass
    build(gens, stamps=('cyc' if 'cyc' in sys.argv else 'stamps' in sys.argv), path=sys.argv[1] if len(sys.argv) > 1 else "sequential_preLN__mha_block__dense_activation_relu__prompt.s")
```

```python
from asmlib import *
from layout import *
from k1 import f32, VM
import os

M32, M16 = "v_mfma_f32_32x32x16_bf16", "v_mfma_f32_16x16x32_bf16"
L_K, L_V = 0, 65536
L_WO = [0, 65536]
L_OT = [32768, 98304]
L_HT, L_EX, L_SM = 0, 131072, 147456
SM_CS, SM_MEAN, SM_RSTD = 0, 1024, 1280
K2_LDS = 163840
POLL_MAX = 400000
PRIO = {0: 3, 2: 2, 3: 1, 4: 0, 5: 3, 14: 2, 18: 1, 20: 0, 21: 3, 36: 2, 41: 1, 44: 0, 45: 3, 56: 2, 60: 1, 63: 0}
if os.environ.get("NOPRIO"): PRIO = {}
SC = "sc1"

def gen_k2(stamps=False):
    k = Kern("attn_ffn_kernel")
    S = Stamps(k, base=64, maxn=18, enabled=bool(stamps), real=(stamps != "cyc"))
    END = "L_k2_end"
    vm = VM()
    sWS, sX, sO = 24, 28, 32
    sW, sG, sM, sJ, sSG, sT, sT2, sT3 = 22, 36, 37, 38, 39, 40, 41, 42
    sKV, sMk, sW1, sMask, sFl = 43, 44, 45, 46, 48
    sFT, sTTp, sKH, sW2, sCnt = 49, 50, 51, 52, 53
    vLin, vKA, vVA = 1, 2, 3
    vXr = 8
    vQ, vK, vV, vO, vNM, vS = 12, [16, 20], [24, 32], 40, 56, [72, 88]
    vW = 128
    def mm(d, a, b, c, op=M32, n=16):
        cs = "0" if c is None else "v[%d:%d]" % (c, c + n - 1)
        k.e("%s v[%d:%d], v[%d:%d], v[%d:%d], %s" % (op, d, d + n - 1, a, a + 3, b, b + 3, cs))
    def ld(dst, voff, soff, tag, imm=0, sc=""):
        k.e("buffer_load_dwordx4 v[%d:%d], v%d, s[%d:%d], s%d offen%s %s" % (dst, dst + 3, voff, sWS, sWS + 3, soff, " offset:%d" % imm if imm else "", sc))
        vm.add(tag)

    k.e("s_cmp_ge_u32 s2, 256")
    k.e("s_cbranch_scc1 %s" % END)
    S.stamp("start")
    k.e("s_load_dwordx2 s[4:5], s[0:1], 0")
    k.e("s_load_dwordx2 s[16:17], s[0:1], 48")
    k.e("s_load_dwordx2 s[20:21], s[0:1], 64")
    k.e("v_lshrrev_b32 v4, 6, v0")
    k.e("v_and_b32 v5, 63, v0")
    k.e("v_readfirstlane_b32 s%d, v4" % sW)
    k.e("v_lshlrev_b32 v%d, 4, v5" % vLin)
    k.e("s_and_b32 s%d, s2, 7" % sG)
    k.e("s_lshr_b32 s%d, s2, 3" % sM)
    k.e("s_and_b32 s%d, s%d, 7" % (sJ, sM))
    k.e("s_lshr_b32 s%d, s%d, 3" % (sSG, sM))
    k.e("s_lshl_b32 s%d, s%d, 2" % (sT, sG))
    k.e("s_add_u32 s%d, s%d, s%d" % (sSG, sSG, sT))
    sHd, sQB = 61, 62
    k.e("s_lshl_b32 s%d, s%d, 2" % (sHd, sG))
    k.e("s_and_b32 s%d, s%d, 3" % (sQB, sM))
    k.e("s_add_u32 s%d, s%d, s%d" % (sHd, sHd, sQB))
    k.e("s_lshr_b32 s%d, s2, 5" % sQB)
    k.e("s_lshr_b32 s%d, s%d, 2" % (sFT, sW))
    k.e("s_bfe_u32 s%d, s%d, 0x10001" % (sTTp, sW))
    k.e("s_and_b32 s%d, s%d, 1" % (sKH, sW))
    k.e("s_lshl_b32 s%d, s%d, 16" % (sKV, sHd))
    k.e("s_lshl_b32 s%d, s%d, 10" % (sMk, sW))
    k.e("s_add_u32 s%d, s%d, s%d" % (sKV, sKV, sMk))
    k.e("s_lshl_b32 s%d, s%d, 13" % (sT, sQB))
    k.e("s_add_u32 s%d, s%d, s%d" % (sT, sT, sKV))
    k.e("s_mul_i32 s%d, s%d, 7" % (sW1, sJ))
    k.e("s_add_u32 s%d, s%d, s%d" % (sW1, sW1, sW))
    k.e("s_lshl_b32 s%d, s%d, 15" % (sW1, sW1))
    k.e("s_add_u32 s%d, s%d, 0x%x" % (sW1, sW1, W1F))
    k.e("s_mul_i32 s%d, s%d, 224" % (sW2, sJ))
    k.e("s_mul_i32 s%d, s%d, 14" % (sT2, sW))
    k.e("s_add_u32 s%d, s%d, s%d" % (sW2, sW2, sT2))
    k.e("s_lshl_b32 s%d, s%d, 10" % (sW2, sW2))
    k.e("s_add_u32 s%d, s%d, 0x%x" % (sW2, sW2, W2F))
    k.e("s_mov_b32 s%d, 0x0000ffff" % sMask)
    k.e("s_mov_b32 s%d, 0x0000ffff" % (sMask + 1))
    k.e("s_lshl_b32 s%d, s%d, 11" % (sFl, sSG))
    k.e("s_add_u32 s%d, s%d, 0x%x" % (sFl, sFl, FLG))
    k.e("s_lshl_b32 s59, s%d, 12" % sW)
    k.e("s_lshl_b32 s60, s%d, 16" % sJ)
    k.e("s_add_u32 s60, s60, s59")
    k.e("s_add_u32 s60, s60, 0x%x" % WOF)
    k.e("s_waitcnt lgkmcnt(0)")
    srd(k, sWS, 20, WS_SIZE)
    srd(k, sX, 4, 2048 * 1024)
    srd(k, sO, 16, 2048 * 1024)
    S.stamp("karg")
    ld(vQ, vLin, sT, "q")
    def kv_pair(i):
        return [["s_add_u32 m0, s%d, %d" % (sMk, L_K + i * 8192), "s_add_u32 s%d, s%d, 0x%x" % (sT2, sKV, KF + i * 8192),
                 "buffer_load_dwordx4 v%d, s[%d:%d], s%d offen lds" % (vLin, sWS, sWS + 3, sT2)],
                ["s_add_u32 m0, s%d, %d" % (sMk, L_V + i * 8192), "s_add_u32 s%d, s%d, 0x%x" % (sT2, sKV, VF + i * 8192),
                 "buffer_load_dwordx4 v%d, s[%d:%d], s%d offen lds" % (vLin, sWS, sWS + 3, sT2)]]
    def emit_dma(g, tag):
        for l in g: k.e(l)
        vm.add(tag)
    PRO = int(os.environ.get('PRO', '2'))
    for i in range(PRO):
        for g in kv_pair(i): emit_dma(g, ("kv", i))
    k.e("v_mov_b32 v%d, v%d" % (vKA, vLin))
    k.e("v_lshrrev_b32 v4, 5, v5")
    k.e("v_and_b32 v6, 15, v5")
    k.e("v_lshlrev_b32 v4, 8, v4")
    k.e("v_lshl_add_u32 v4, v6, 4, v4")
    k.e("v_add_u32 v%d, %d, v4" % (vVA, L_V))
    k.e("v_and_b32 v6, 31, v5")
    k.e("v_cmp_eq_u32 vcc, 16, v6")
    k.e("v_mov_b32 v6, 0x3f803f80")
    k.e("s_nop 0")
    k.e("v_cndmask_b32 v6, 0, v6, vcc")
    for r in range(vV[0], vV[1] + 8): k.e("v_mov_b32 v%d, v6" % r)
    for r in range(vO, vO + 16): k.e("v_mov_b32 v%d, 0" % r)
    k.e("v_and_b32 v4, 31, v5")
    k.e("v_lshlrev_b32 v4, 10, v4")
    k.e("v_lshrrev_b32 v6, 5, v5")
    k.e("v_lshl_add_u32 v7, v6, 3, v4")
    k.e("s_lshl_b32 s%d, s%d, 1" % (sT3, sSG))
    k.e("s_add_u32 s%d, s%d, s%d" % (sT3, sT3, sTTp))
    k.e("s_lshl_b32 s54, s%d, 15" % sT3)
    k.e("s_lshl_b32 s%d, s%d, 7" % (sT, sJ))
    k.e("s_add_u32 s54, s54, s%d" % sT)
    k.e("s_lshl_b32 s%d, s%d, 6" % (sT, sFT))
    k.e("s_add_u32 s54, s54, s%d" % sT)
    k.e("s_lshl_b32 s%d, s%d, 5" % (sT, sKH))
    k.e("s_add_u32 s54, s54, s%d" % sT)

    def rdK(t, b): return "ds_read_b128 v[%d:%d], v%d offset:%d" % (vK[b], vK[b] + 3, vKA, t * 1024)
    def rdV(t, b): return ["s_mov_b64 exec, s[%d:%d]" % (sMask, sMask + 1),
                           "ds_read_b128 v[%d:%d], v%d offset:%d" % (vV[b], vV[b] + 3, vVA, t * 1024),
                           "ds_read_b128 v[%d:%d], v%d offset:%d" % (vV[b] + 4, vV[b] + 7, vVA, t * 1024 + 512),
                           "s_mov_b64 exec, -1"]
    k.e("s_waitcnt vmcnt(%d)" % vm.n_after(("kv", 0)))
    k.e("s_barrier")
    S.stamp("kv0")
    k.e(rdK(0, 0)); k.e(rdK(1, 1))
    for l in rdV(0, 0): k.e(l)
    k.e("s_waitcnt lgkmcnt(3)")
    mm(vS[0], vK[0], vQ, None)
    k.e("s_nop 11")
    def rowmax(src, dst):
        k.e("v_max3_f32 v%d, v%d, v%d, v%d" % (dst, src, src + 1, src + 2))
        for r in range(3, 15, 2):
            k.e("v_max3_f32 v%d, v%d, v%d, v%d" % (dst, dst, src + r, src + r + 1))
        k.e("v_max_f32 v%d, v%d, v%d" % (dst, dst, src + 15))
    def setnm(src):
        k.e("v_mov_b32 v6, v%d" % src)
        k.e("s_nop 1")
        k.e("v_permlane32_swap_b32 v6, v%d" % src)
        k.e("v_max_f32 v6, v6, v%d" % src)
        for r in range(16): k.e("v_sub_f32 v%d, 0, v6" % (vNM + r))
        k.e("s_nop 1")
    rowmax(vS[0], 4)
    setnm(4)
    mm(vS[0], vK[0], vQ, vNM)
    k.e(rdK(2, 0))
    k.e("s_nop 10")

    sched = {}
    def at(t, g, tag): sched.setdefault(t, []).append((g, tag))
    for i in range(PRO, 8):
        g = kv_pair(i)
        at(2 * (i - PRO), g[0], ("kv", i)); at(2 * (i - PRO) + 1, g[1], ("kv", i))
    W0 = 11
    for i in range(32):
        t = W0 + (i * 3) // 2
        f1 = i * 1024
        f2 = ((i % 2) * 112 + (i // 2)) * 1024 if i < 28 else 0
        g = ["s_add_u32 s%d, s%d, %d" % (sT2, sW1, f1), "s_add_u32 s%d, s%d, %d" % (sT3, sW2, f2),
             "s_cmp_eq_u32 s%d, 7" % sW, "s_cselect_b32 s%d, s%d, s%d" % (sT2, sT3, sT2),
             "buffer_load_dwordx4 v[%d:%d], v%d, s[%d:%d], s%d offen" % (vW + 4 * i, vW + 4 * i + 3, vLin, sWS, sWS + 3, sT2)]
        at(t, g, "w1")
    for i in range(8):
        ft, q = i // 4, i % 4
        at(46 + 2 * i, ["s_add_u32 m0, s59, %d" % (L_WO[ft] + q * 1024), "s_add_u32 s%d, s60, %d" % (sT2, ft * 32768 + q * 1024),
                        "buffer_load_dwordx4 v%d, s[%d:%d], s%d offen lds" % (vLin, sWS, sWS + 3, sT2)], "wo")
    at(61, ["buffer_load_dwordx2 v[%d:%d], v7, s[%d:%d], s54 offen" % (vXr, vXr + 1, sX, sX + 3)], "x")
    at(62, ["buffer_load_dwordx2 v[%d:%d], v7, s[%d:%d], s54 offen offset:16" % (vXr + 2, vXr + 3, sX, sX + 3)], "x")
    bars = {5: 2, 21: 5, 45: 7}

    for t in range(64):
        s, sn = vS[t & 1], vS[(t + 1) & 1]
        vb = vV[t & 1]; vp = vV[(t + 1) & 1]
        e = lambda r: k.e("v_exp_f32 v%d, v%d" % (s + r, s + r))
        cv = lambda i: k.e("v_cvt_pk_bf16_f32 v%d, v%d, v%d" % (s + (i if i < 4 else 4 + i), s + 2 * i, s + 2 * i + 1))
        if t in bars:
            k.e("s_waitcnt vmcnt(%d)" % vm.n_after(("kv", bars[t])))
            k.e("s_barrier")
            if t in (5, 21): S.stamp("t%d" % t)
        if t in PRIO: k.e("s_setprio %d" % PRIO[t])
        e(0); e(1)
        if t > 0: mm(vO, vp + 4, sn + 8, vO)
        if t + 1 < 64:
            for l in rdV(t + 1, (t + 1) & 1): k.e(l)
        e(2); e(3); e(4)
        for g, tag in sched.get(t, []): emit_dma(g, tag)
        e(5); e(6)
        if t + 1 < 64:
            k.e("s_waitcnt lgkmcnt(%d)" % (3 if t + 2 < 64 else 2))
            mm(sn, vK[(t + 1) & 1], vQ, vNM)
            if t + 3 < 64: k.e(rdK(t + 3, (t + 1) & 1))
        e(7); cv(0); cv(1); cv(2); cv(3); e(8); e(9)
        if t + 1 >= 64: k.e("s_waitcnt lgkmcnt(0)")
        mm(vO, vb, s, vO)
        for r in range(10, 16): e(r)
        cv(4); cv(5); cv(6); cv(7)
    k.e("s_nop 1")
    mm(vO, vV[1] + 4, vS[1] + 8, vO)
    S.stamp("attn")
    FIN, FB = "L_k2_fin", "L_k2_fb"
    k.e("s_setprio 0")
    def bcast_l():
        k.e("s_nop 11")
        k.e("v_mov_b32 v%d, v%d" % (vO + 9, vO + 8))
        k.e("s_nop 1")
        k.e("v_permlane32_swap_b32 v%d, v%d" % (vO + 8, vO + 9))
    bcast_l()
    k.e("v_max3_f32 v4, |v%d|, |v%d|, |v%d|" % (vO, vO + 1, vO + 2))
    k.e("v_max3_f32 v4, v4, |v%d|, |v%d|" % (vO + 3, vO + 4))
    k.e("v_max3_f32 v4, v4, |v%d|, |v%d|" % (vO + 5, vO + 6))
    k.e("v_max3_f32 v4, v4, |v%d|, |v%d|" % (vO + 7, vO + 8))
    k.e("v_add_f32 v6, v%d, v%d" % (vO, vO + 1))
    for r in range(2, 9): k.e("v_add_f32 v6, v6, v%d" % (vO + r))
    k.e("v_mov_b32 v5, 0x%08x" % 0x71800000)
    k.e("v_cmp_nlt_f32 vcc, v4, v5")
    k.e("v_cmp_u_f32 s[56:57], v6, v6")
    k.e("s_or_b64 vcc, vcc, s[56:57]")
    k.e("s_cmp_eq_u64 vcc, 0")
    k.e("s_cbranch_scc1 %s" % FIN)
    k.label(FB)
    k.c("rare path: exact row max over all keys, then recompute")
    k.e("v_mov_b32 v4, 0xff800000")
    k.e("s_lshl_b32 s%d, s%d, 16" % (sT, sHd))
    k.e("s_add_u32 s%d, s%d, 0x%x" % (sT, sT, KF))
    k.e("s_mov_b32 s%d, 64" % sCnt)
    k.label("L_k2_mx")
    k.e("buffer_load_dwordx4 v[%d:%d], v%d, s[%d:%d], s%d offen" % (vK[0], vK[0] + 3, vLin, sWS, sWS + 3, sT))
    k.e("s_add_u32 s%d, s%d, 1024" % (sT, sT))
    k.e("s_waitcnt vmcnt(0)")
    mm(vS[0], vK[0], vQ, None)
    k.e("s_nop 11")
    rowmax(vS[0], 5)
    k.e("v_max_f32 v4, v4, v5")
    k.e("s_sub_u32 s%d, s%d, 1" % (sCnt, sCnt))
    k.e("s_cmp_lg_u32 s%d, 0" % sCnt)
    k.e("s_cbranch_scc1 L_k2_mx")
    setnm(4)
    for r in range(vO, vO + 16): k.e("v_mov_b32 v%d, 0" % r)
    k.e("v_subrev_u32 v105, %d, v%d" % (L_V, vVA))
    k.e("s_lshl_b32 s%d, s%d, 16" % (sT, sHd))
    k.e("s_add_u32 s%d, s%d, 0x%x" % (sT2, sT, VF))
    k.e("s_add_u32 s%d, s%d, 0x%x" % (sT, sT, KF))
    k.e("s_mov_b32 s%d, 64" % sCnt)
    k.label("L_k2_rc")
    k.e("buffer_load_dwordx4 v[%d:%d], v%d, s[%d:%d], s%d offen" % (vK[0], vK[0] + 3, vLin, sWS, sWS + 3, sT))
    k.e("s_mov_b64 exec, s[%d:%d]" % (sMask, sMask + 1))
    k.e("buffer_load_dwordx4 v[%d:%d], v105, s[%d:%d], s%d offen" % (vV[0], vV[0] + 3, sWS, sWS + 3, sT2))
    k.e("buffer_load_dwordx4 v[%d:%d], v105, s[%d:%d], s%d offen offset:512" % (vV[0] + 4, vV[0] + 7, sWS, sWS + 3, sT2))
    k.e("s_mov_b64 exec, -1")
    k.e("s_add_u32 s%d, s%d, 1024" % (sT, sT))
    k.e("s_add_u32 s%d, s%d, 1024" % (sT2, sT2))
    k.e("s_waitcnt vmcnt(0)")
    mm(vS[0], vK[0], vQ, vNM)
    k.e("s_nop 11")
    for r in range(16): k.e("v_exp_f32 v%d, v%d" % (vS[0] + r, vS[0] + r))
    k.e("s_nop 0")
    for i in range(8): k.e("v_cvt_pk_bf16_f32 v%d, v%d, v%d" % (vS[0] + (i if i < 4 else 4 + i), vS[0] + 2 * i, vS[0] + 2 * i + 1))
    k.e("s_nop 1")
    mm(vO, vV[0], vS[0], vO)
    mm(vO, vV[0] + 4, vS[0] + 8, vO)
    k.e("s_sub_u32 s%d, s%d, 1" % (sCnt, sCnt))
    k.e("s_cmp_lg_u32 s%d, 0" % sCnt)
    k.e("s_cbranch_scc1 L_k2_rc")
    bcast_l()
    k.label(FIN)
    k.e("v_rcp_f32 v4, v%d" % (vO + 8))
    k.e("s_lshl_b32 s%d, s%d, 3" % (sT, sQB))
    k.e("s_add_u32 s%d, s%d, s%d" % (sT, sT, sW))
    for r in range(8): k.e("v_mul_f32 v%d, v%d, v4" % (vO + r, vO + r))
    for i in range(4): k.e("v_cvt_pk_bf16_f32 v%d, v%d, v%d" % (vO + i, vO + 2 * i, vO + 2 * i + 1))
    k.e("s_lshl_b32 s%d, s%d, 5" % (sT2, sT))
    k.e("s_add_u32 s%d, s%d, s%d" % (sT2, sT2, sHd))
    k.e("s_lshl_b32 s%d, s%d, 10" % (sT2, sT2))
    k.e("s_add_u32 s%d, s%d, 0x%x" % (sT2, sT2, OF))
    k.e("buffer_store_dwordx4 v[%d:%d], v%d, s[%d:%d], s%d offen %s" % (vO, vO + 3, vLin, sWS, sWS + 3, sT2, SC))
    vm.add("ost")
    def publish(lanes, voff_setup, soff):
        L = k.lab("L_pub")
        k.e("s_waitcnt vmcnt(0)")
        k.e("s_barrier")
        k.e("s_cmp_lg_u32 s%d, 0" % sW)
        k.e("s_cbranch_scc1 %s" % L)
        k.e("s_mov_b64 exec, %d" % ((1 << lanes) - 1))
        k.e("buffer_store_dword v5, v4, s[%d:%d], s%d offen %s" % (sWS, sWS + 3, soff, SC))
        k.e("s_mov_b64 exec, -1")
        k.label(L)
        vm.q = []
    k.e("v_lshlrev_b32 v4, 7, v%d" % vLin)
    k.e("v_mov_b32 v5, 1")
    k.e("s_lshl_b32 s55, s%d, 13" % sQB)
    k.e("s_lshl_b32 s%d, s%d, 2" % (sT, sHd))
    k.e("s_add_u32 s55, s55, s%d" % sT)
    k.e("s_add_u32 s55, s55, 0x%x" % FLG)
    publish(4, None, 55)
    k.e("v_mov_b32 v4, 0")
    S.stamp("opub")
    vSel, vCs = 120, 124
    k.e("v_lshrrev_b32 v6, 4, v%d" % vLin)
    k.e("v_lshrrev_b32 v7, 4, v6")
    k.e("v_lshrrev_b32 v12, 2, v6")
    k.e("v_xor_b32 v7, v7, v12")
    k.e("v_and_b32 v7, 1, v7")
    k.e("v_subrev_u32 v7, 1, v7")
    k.e("v_and_b32 v%d, 0x3f803f80, v7" % vSel)
    for i in range(1, 4): k.e("v_mov_b32 v%d, v%d" % (vSel + i, vSel))
    k.e("s_nop 1")
    for i in range(32): mm(vCs, vSel, vW + 4 * i, None if i == 0 else vCs, op=M16, n=4)
    k.e("v_and_b32 v7, 31, v6")
    k.e("v_lshlrev_b32 v7, 2, v7")
    k.e("s_lshl_b32 s%d, s%d, 7" % (sT, sW))
    k.e("s_add_u32 s%d, s%d, %d" % (sT, sT, L_SM + SM_CS))
    k.e("v_add_u32 v7, s%d, v7" % sT)
    k.e("s_nop 4")
    k.e("ds_write_b32 v7, v%d" % vCs)

    vPoll = 7
    def poll(off, mask_lo):
        L, D = k.lab("L_poll"), k.lab("L_pdone")
        k.e("s_cmp_lg_u32 s%d, 0" % sW)
        k.e("s_cbranch_scc1 %s" % D)
        k.e("v_lshrrev_b32 v6, 2, v%d" % vLin)
        k.e("s_mov_b32 s%d, 0" % sCnt)
        k.e("s_mov_b32 exec_hi, 0")
        k.e("s_mov_b32 exec_lo, 0x%x" % mask_lo)
        k.label(L)
        k.e("buffer_load_dword v%d, v6, s[%d:%d], s%d offen offset:%d %s" % (vPoll, sWS, sWS + 3, sFl, off, SC))
        k.e("s_add_u32 s%d, s%d, 1" % (sCnt, sCnt))
        k.e("s_waitcnt vmcnt(0)")
        k.e("v_cmp_ne_u32 vcc, 0, v%d" % vPoll)
        k.e("s_cmp_gt_u32 s%d, %d" % (sCnt, POLL_MAX))
        k.e("s_cbranch_scc1 %s" % (D + "x"))
        k.e("s_cmp_eq_u64 vcc, exec")
        k.e("s_cbranch_scc0 %s" % L)
        k.label(D + "x")
        k.e("s_mov_b64 exec, -1")
        k.label(D)
        k.e("s_barrier")
    poll(0, 0xffffffff)
    S.stamp("opoll")
    k.e("s_lshl_b32 s%d, s%d, 16" % (sT, sSG))
    k.e("s_lshl_b32 s%d, s%d, 12" % (sT2, sW))
    k.e("s_add_u32 s%d, s%d, s%d" % (sT, sT, sT2))
    def tile_dma(base, ldsbase):
        for tt in range(2):
            k.e("s_add_u32 m0, s%d, %d" % (sT2, ldsbase[tt]))
            k.e("s_add_u32 s%d, s%d, 0x%x" % (sT3, sT, base + tt * 32768))
            for i in range(4):
                k.e("buffer_load_dwordx4 v%d, s[%d:%d], s%d offen offset:%d %s lds" % (vLin, sWS, sWS + 3, sT3, i * 1024, SC))
                vm.add("tile")
    tile_dma(OF, L_OT)
    k.e("s_lshl_b32 s%d, s%d, 14" % (sT3, sKH))
    k.e("v_add_u32 v2, s%d, v%d" % (sT3, vLin))
    k.e("s_lshl_b32 s%d, s%d, 16" % (sT3, sFT))
    k.e("v_add_u32 v3, s%d, v2" % sT3)
    k.e("s_lshl_b32 s%d, s%d, 16" % (sT3, sTTp))
    k.e("v_add_u32 v2, s%d, v2" % sT3)
    aP = 24
    fA = [56 + 4 * i for i in range(16)]
    fB = [12, 16, 20, 40, 44, 48]
    for i in range(16):
        k.e("ds_read_b128 v[%d:%d], v3 offset:%d" % (fA[i], fA[i] + 3, L_WO[0] + i * 1024))
    k.e("s_waitcnt vmcnt(0) lgkmcnt(0)")
    k.e("s_barrier")
    S.stamp("otile")
    NB = len(fB)
    for i in range(min(NB - 1, 16)):
        k.e("ds_read_b128 v[%d:%d], v2 offset:%d" % (fB[i], fB[i] + 3, L_OT[0] + i * 1024))
    for i in range(16):
        nxt = i + NB - 1
        k.e("s_waitcnt lgkmcnt(%d)" % (min(16, nxt) - 1 - i))
        mm(aP, fA[i], fB[i % NB], None if i == 0 else aP)
        if nxt < 16: k.e("ds_read_b128 v[%d:%d], v2 offset:%d" % (fB[nxt % NB], fB[nxt % NB] + 3, L_OT[0] + nxt * 1024))
    k.e("s_lshl_b32 s%d, s%d, 11" % (sT, sW))
    k.e("s_add_u32 s%d, s%d, %d" % (sT, sT, L_EX))
    k.e("v_add_u32 v2, s%d, v%d" % (sT, vLin))
    k.e("v_xor_b32 v3, 2048, v2")
    k.e("s_cmp_eq_u32 s%d, 0" % sKH)
    k.e("s_cselect_b64 vcc, -1, 0")
    k.e("s_nop 7")
    for r in range(8):
        k.e("v_cndmask_b32 v%d, v%d, v%d, vcc" % (40 + r, aP + r, aP + 8 + r))
        k.e("v_cndmask_b32 v%d, v%d, v%d, vcc" % (48 + r, aP + 8 + r, aP + r))
    k.e("ds_write_b128 v2, v[40:43]")
    k.e("ds_write_b128 v2, v[44:47] offset:1024")
    for i in range(4):
        k.e("v_lshlrev_b32 v%d, 16, v%d" % (12 + 2 * i, vXr + i))
        k.e("v_and_b32 v%d, 0xffff0000, v%d" % (13 + 2 * i, vXr + i))
    for r in range(8): k.e("v_add_f32 v%d, v%d, v%d" % (48 + r, 48 + r, 12 + r))
    k.e("s_waitcnt lgkmcnt(0)")
    k.e("s_barrier")
    k.e("ds_read_b128 v[40:43], v3")
    k.e("ds_read_b128 v[44:47], v3 offset:1024")
    k.e("s_lshl_b32 s%d, s%d, 1" % (sT, sSG))
    k.e("s_add_u32 s%d, s%d, s%d" % (sT, sT, sTTp))
    k.e("s_lshl_b32 s%d, s%d, 5" % (sT, sT))
    k.e("s_lshl_b32 s%d, s%d, 2" % (sT2, sJ))
    k.e("s_add_u32 s%d, s%d, s%d" % (sT, sT, sT2))
    k.e("s_lshl_b32 s%d, s%d, 1" % (sT2, sFT))
    k.e("s_add_u32 s%d, s%d, s%d" % (sT, sT, sT2))
    k.e("s_add_u32 s%d, s%d, s%d" % (sT, sT, sKH))
    k.e("s_lshl_b32 s%d, s%d, 10" % (sT2, sT))
    k.e("s_add_u32 s%d, s%d, 0x%x" % (sT2, sT2, HF))
    k.e("s_lshl_b32 s%d, s%d, 8" % (sT3, sT))
    k.e("s_add_u32 s%d, s%d, 0x%x" % (sT3, sT3, ST))
    k.e("s_waitcnt lgkmcnt(0)")
    for r in range(8): k.e("v_add_f32 v%d, v%d, v%d" % (48 + r, 48 + r, 40 + r))
    for i in range(4): k.e("v_cvt_pk_bf16_f32 v%d, v%d, v%d" % (vXr + i, 48 + 2 * i, 49 + 2 * i))
    k.e("buffer_store_dwordx4 v[%d:%d], v%d, s[%d:%d], s%d offen %s" % (vXr, vXr + 3, vLin, sWS, sWS + 3, sT2, SC))
    for i in range(4):
        k.e("v_lshlrev_b32 v%d, 16, v%d" % (48 + 2 * i, vXr + i))
        k.e("v_and_b32 v%d, 0xffff0000, v%d" % (49 + 2 * i, vXr + i))
    k.e("v_add_f32 v40, v48, v49")
    k.e("v_mul_f32 v41, v48, v48")
    k.e("v_fmac_f32 v41, v49, v49")
    for r in range(2, 8):
        k.e("v_add_f32 v40, v40, v%d" % (48 + r))
        k.e("v_fmac_f32 v41, v%d, v%d" % (48 + r, 48 + r))
    k.e("v_mov_b32 v42, v40")
    k.e("v_mov_b32 v43, v41")
    k.e("v_lshrrev_b32 v6, 1, v%d" % vLin)
    k.e("s_nop 0")
    k.e("v_permlane32_swap_b32 v40, v42")
    k.e("v_permlane32_swap_b32 v41, v43")
    k.e("v_add_f32 v40, v40, v42")
    k.e("v_add_f32 v41, v41, v43")
    k.e("s_mov_b32 exec_hi, 0")
    k.e("buffer_store_dwordx2 v[40:41], v6, s[%d:%d], s%d offen %s" % (sWS, sWS + 3, sT3, SC))
    k.e("s_mov_b32 exec_hi, -1")
    k.e("s_lshl_b32 s%d, s%d, 2" % (sT, sJ))
    k.e("s_add_u32 s58, s%d, s%d" % (sT, sFl))
    k.e("s_add_u32 s55, s58, 256")
    publish(1, None, 55)
    S.stamp("hpub")
    poll(256, 0xff)
    S.stamp("hpoll")
    k.e("s_lshl_b32 s%d, s%d, 16" % (sT, sSG))
    k.e("s_lshl_b32 s%d, s%d, 12" % (sT2, sW))
    k.e("s_add_u32 s%d, s%d, s%d" % (sT, sT, sT2))
    tile_dma(HF, [L_HT, L_HT + 32768])
    W7, W7J, P4E = "L_k2_w7", "L_k2_w7j", "L_k2_p4e"
    k.e("s_cmp_eq_u32 s%d, 7" % sW)
    k.e("s_cbranch_scc1 %s" % W7)
    k.e("v_add_u32 v2, %d, v%d" % (L_HT, vLin))
    k.e("s_waitcnt vmcnt(0)")
    k.e("s_barrier")
    S.stamp("htile")
    aU = [24, 40]; fH = [[56 + 8 * b + 4 * tt for tt in range(2)] for b in range(4)]
    def rdH(ks):
        for tt in range(2):
            b = fH[ks % 4][tt]
            k.e("ds_read_b128 v[%d:%d], v2 offset:%d" % (b, b + 3, tt * 32768 + ks * 1024))
    for ks in range(3): rdH(ks)
    for ks in range(32):
        n_out = 2 * (min(32, ks + 3) - ks - 1)
        k.e("s_waitcnt lgkmcnt(%d)" % (n_out + 1))
        mm(aU[0], vW + 4 * ks, fH[ks % 4][0], None if ks == 0 else aU[0])
        if ks + 3 < 32: rdH(ks + 3); n_out += 2
        k.e("s_waitcnt lgkmcnt(%d)" % n_out)
        mm(aU[1], vW + 4 * ks, fH[ks % 4][1], None if ks == 0 else aU[1])
        if ks < 28:
            k.e("s_add_u32 s%d, s%d, %d" % (sT2, sW2, ((ks % 2) * 112 + ks // 2) * 1024))
            ld(vW + 4 * ks, vLin, sT2, "w2")
    k.e("v_lshrrev_b32 v6, 9, v%d" % vLin)
    k.e("v_lshlrev_b32 v6, 4, v6")
    k.e("s_lshl_b32 s%d, s%d, 7" % (sT, sW))
    k.e("s_add_u32 s%d, s%d, %d" % (sT, sT, L_SM + SM_CS))
    k.e("v_add_u32 v6, s%d, v6" % sT)
    for q in range(4): k.e("ds_read_b128 v[%d:%d], v6 offset:%d" % (56 + 4 * q, 59 + 4 * q, q * 32))
    k.e("s_branch %s" % W7J)
    k.label(W7)
    k.c("@reset")
    k.c("wave 7: LayerNorm statistics of the 64 rows from the per-fragment partials")
    k.e("v_lshrrev_b32 v6, 4, v%d" % vLin)
    k.e("v_and_b32 v2, 31, v6")
    k.e("v_lshlrev_b32 v2, 3, v2")
    k.e("v_lshrrev_b32 v6, 5, v6")
    k.e("v_lshl_add_u32 v2, v6, 12, v2")
    k.e("s_lshl_b32 s%d, s%d, 14" % (sT, sSG))
    k.e("s_add_u32 s%d, s%d, 0x%x" % (sT, sT, ST))
    for tt in range(2):
        for i in range(16):
            k.e("buffer_load_dwordx2 v[%d:%d], v2, s[%d:%d], s%d offen offset:%d %s" % (24 + 32 * tt + 2 * i, 25 + 32 * tt + 2 * i, sWS, sWS + 3, sT, i * 256, SC))
        if tt == 0: k.e("s_add_u32 s%d, s%d, 8192" % (sT, sT))
    k.e("s_waitcnt vmcnt(32)")
    k.e("s_barrier")
    k.e("s_waitcnt vmcnt(0)")
    k.e("v_lshrrev_b32 v6, 4, v%d" % vLin)
    k.e("v_and_b32 v6, 31, v6")
    k.e("v_lshlrev_b32 v6, 2, v6")
    for tt in range(2):
        b = 24 + 32 * tt
        for st in (16, 8, 4, 2):
            for i in range(st): k.e("v_add_f32 v%d, v%d, v%d" % (b + i, b + i, b + i + st))
        k.e("v_mov_b32 v%d, v%d" % (b + 2, b))
        k.e("v_mov_b32 v%d, v%d" % (b + 3, b + 1))
        k.e("s_nop 1")
        k.e("v_permlane32_swap_b32 v%d, v%d" % (b, b + 2))
        k.e("v_permlane32_swap_b32 v%d, v%d" % (b + 1, b + 3))
        k.e("v_add_f32 v%d, v%d, v%d" % (b, b, b + 2))
        k.e("v_add_f32 v%d, v%d, v%d" % (b + 1, b + 1, b + 3))
        k.e("v_mul_f32 v%d, %s, v%d" % (b, f32(1.0 / 512), b))
        k.e("v_mul_f32 v%d, %s, v%d" % (b + 1, f32(1.0 / 512), b + 1))
        k.e("v_fma_f32 v%d, -v%d, v%d, v%d" % (b + 1, b, b, b + 1))
        k.e("v_max_f32 v%d, 0, v%d" % (b + 1, b + 1))
        k.e("v_add_f32 v%d, %s, v%d" % (b + 1, f32(EPS), b + 1))
        k.e("v_rsq_f32 v%d, v%d" % (b + 1, b + 1))
        k.e("v_add_u32 v7, %d, v6" % (L_SM + tt * 128))
        k.e("ds_write_b32 v7, v%d offset:%d" % (b, SM_MEAN))
        k.e("ds_write_b32 v7, v%d offset:%d" % (b + 1, SM_RSTD))
    k.label(W7J)
    k.e("s_waitcnt lgkmcnt(0)")
    k.e("s_barrier")
    S.stamp("p4mm")
    vRs = 122
    k.e("v_lshrrev_b32 v6, 4, v%d" % vLin)
    k.e("v_and_b32 v6, 31, v6")
    k.e("v_lshlrev_b32 v6, 2, v6")
    k.e("v_add_u32 v6, %d, v6" % L_SM)
    k.e("s_lshl_b32 s%d, s%d, 7" % (sT, sTTp))
    k.e("v_add_u32 v7, s%d, v6" % sT)
    k.e("ds_read_b32 v120, v6 offset:%d" % SM_MEAN)
    k.e("ds_read_b32 v121, v6 offset:%d" % (SM_MEAN + 128))
    k.e("ds_read_b32 v%d, v7 offset:%d" % (vRs, SM_RSTD))
    k.e("s_cmp_eq_u32 s%d, 7" % sW)
    k.e("s_cbranch_scc1 %s" % P4E)
    k.e("s_mul_i32 s%d, s%d, 224" % (sT, sSG))
    k.e("s_mul_i32 s%d, s%d, 14" % (sT2, sJ))
    k.e("s_add_u32 s%d, s%d, s%d" % (sT, sT, sT2))
    k.e("s_lshl_b32 s%d, s%d, 1" % (sT2, sW))
    k.e("s_add_u32 s%d, s%d, s%d" % (sT, sT, sT2))
    k.e("s_lshl_b32 s%d, s%d, 10" % (sT, sT))
    k.e("s_add_u32 s%d, s%d, 0x%x" % (sT, sT, UF))
    k.e("s_add_u32 s%d, s%d, %d" % (sT2, sT, 112 * 1024))
    k.e("v_mov_b32 v3, 0")
    k.e("s_waitcnt lgkmcnt(0)")
    for tt in range(2):
        a = aU[tt]
        for r in range(16): k.e("v_fma_f32 v%d, -v%d, v%d, v%d" % (a + r, 120 + tt, 56 + r, a + r))
        for i in range(8): k.e("v_cvt_pk_bf16_f32 v%d, v%d, v%d" % (a + i, a + 2 * i, a + 2 * i + 1))
        for i in range(8): k.e("v_pk_max_i16 v%d, v%d, v3" % (a + i, a + i))
        for rh in range(2):
            k.e("buffer_store_dwordx4 v[%d:%d], v%d, s[%d:%d], s%d offen offset:%d %s" % (a + 4 * rh, a + 4 * rh + 3, vLin, sWS, sWS + 3, sT if tt == 0 else sT2, rh * 1024, SC))
    k.label(P4E)
    k.e("s_add_u32 s55, s58, 512")
    k.e("s_waitcnt lgkmcnt(0)")
    publish(1, None, 55)
    S.stamp("upub")
    poll(512, 0xff)
    S.stamp("upoll")
    k.e("s_mul_i32 s%d, s%d, 224" % (sT, sSG))
    k.e("s_mul_i32 s%d, s%d, 14" % (sT2, sW))
    k.e("s_add_u32 s%d, s%d, s%d" % (sT, sT, sT2))
    k.e("s_lshl_b32 s%d, s%d, 10" % (sT, sT))
    k.e("s_add_u32 s%d, s%d, 0x%x" % (sT, sT, UF))
    ring = [12 + 4 * i for i in range(11)] + [240 + 4 * i for i in range(4)]
    ring = ring[:14]
    aF = [[56, 72], [88, 104]]
    def ldU(f):
        i, tt = f // 2, f % 2
        k.e("s_add_u32 s%d, s%d, %d" % (sT2, sT, tt * 112 * 1024 + i * 1024))
        ld(ring[f % len(ring)], vLin, sT2, ("u", f), sc=SC)
    NR = len(ring)
    for f in range(NR): ldU(f)
    for f in range(28):
        i, tt = f // 2, f % 2
        k.e("s_waitcnt vmcnt(%d)" % vm.n_after(("u", f)))
        for ft in range(2):
            mm(aF[ft][tt], vW + 4 * (2 * i + ft), ring[f % NR], None if i == 0 else aF[ft][tt])
        if f + NR < 28: ldU(f + NR)
    S.stamp("p5mm")
    k.e("s_lshl_b32 s%d, s%d, 14" % (sT, sW))
    k.e("v_add_u32 v2, s%d, v%d" % (sT, vLin))
    k.e("s_lshl_b32 s%d, s%d, 11" % (sT, sW))
    k.e("v_add_u32 v3, s%d, v%d" % (sT, vLin))
    k.e("v_add_u32 v4, 65536, v3")
    k.e("s_nop 7")
    for ft in range(2):
        for tt in range(2):
            for q in range(4):
                a = aF[ft][tt] + 4 * q
                k.e("ds_write_b128 v2, v[%d:%d] offset:%d" % (a, a + 3, ((2 * ft + tt) * 4 + q) * 1024))
    for i in range(4):
        k.e("v_lshlrev_b32 v%d, 16, v%d" % (12 + 2 * i, vXr + i))
        k.e("v_and_b32 v%d, 0xffff0000, v%d" % (13 + 2 * i, vXr + i))
    k.e("v_lshrrev_b32 v6, 4, v%d" % vLin)
    k.e("v_and_b32 v7, 31, v6")
    k.e("v_lshlrev_b32 v7, 10, v7")
    k.e("v_lshrrev_b32 v6, 5, v6")
    k.e("v_lshl_add_u32 v7, v6, 4, v7")
    k.e("s_waitcnt lgkmcnt(0)")
    k.e("s_barrier")
    for p in range(8):
        for q in range(2):
            k.e("ds_read_b128 v[%d:%d], v%d offset:%d" % (56 + 8 * p + 4 * q, 59 + 8 * p + 4 * q, 3 if p < 4 else 4, (p % 4) * 16384 + q * 1024))
    for p in range(1, 8):
        k.e("s_waitcnt lgkmcnt(%d)" % (14 - 2 * p))
        for r in range(8): k.e("v_add_f32 v%d, v%d, v%d" % (56 + r, 56 + r, 56 + 8 * p + r))
    for r in range(8): k.e("v_fma_f32 v%d, v%d, v%d, v%d" % (12 + r, 56 + r, vRs, 12 + r))
    for i in range(4): k.e("v_cvt_pk_bf16_f32 v%d, v%d, v%d" % (20 + i, 12 + 2 * i, 13 + 2 * i))
    k.e("s_nop 1")
    k.e("v_permlane32_swap_b32 v20, v22")
    k.e("v_permlane32_swap_b32 v21, v23")
    k.e("buffer_store_dwordx4 v[20:23], v7, s[%d:%d], s54 offen" % (sO, sO + 3))
    S.dump(sWS, DBG2, vt=2, waves=8)
    k.stamps = S.names
    k.label(END)
    return k, (256, 512, K2_LDS)
```

```python
import re

TRANS = ("v_exp_", "v_log_", "v_rcp_", "v_rsq_", "v_sqrt_", "v_sin_", "v_cos_")
MFMA_PASSES = {"v_mfma_f32_32x32x16_bf16": 8, "v_mfma_f32_16x16x32_bf16": 4, "v_mfma_f32_4x4x4_16b_bf16": 2}
D_TO_VALU = {2: 5, 4: 8, 8: 12, 16: 20}
D_TO_C_OVL = {2: 4, 4: 6, 8: 10, 16: 18}
C_WAR = {2: 1, 4: 3, 8: 7, 16: 15}

_reg = re.compile(r"^(-|\|)?(abs\()?([vsa])(\d+|\[(\d+):(\d+)\])\)?\|?$")

def regs_of(op):
    op = op.strip()
    if op in ("vcc",): return {("s", 106), ("s", 107)}
    if op == "vcc_lo": return {("s", 106)}
    if op == "vcc_hi": return {("s", 107)}
    if op == "exec": return {("s", 126), ("s", 127)}
    if op == "m0": return {("s", 124)}
    m = _reg.match(op.replace("-|", "|"))
    if not m: return set()
    k = m.group(3)
    if m.group(5) is not None:
        return {(k, i) for i in range(int(m.group(5)), int(m.group(6)) + 1)}
    return {(k, int(m.group(4)))}

class Ins:
    __slots__ = ("text", "op", "ops", "wr", "rd", "kind", "ws", "A", "B", "C", "passes", "lds", "line")
    def __init__(self, text):
        self.text = text
        t = text.split(";")[0].strip()
        parts = t.split(None, 1)
        self.op = parts[0]
        rest = parts[1] if len(parts) > 1 else ""
        ops = [o.strip() for o in rest.split(",")] if rest else []
        mods = ""
        if ops:
            lp = ops[-1].split()
            ops[-1] = lp[0]
            mods = " ".join(lp[1:])
        self.ops = ops
        self.ws = 1
        self.wr = set(); self.rd = set(); self.A = self.B = self.C = set(); self.passes = 0; self.lds = False
        op = self.op
        R = [regs_of(o) for o in ops]
        U = lambda l: set().union(*l) if l else set()
        if op.startswith("v_mfma"):
            self.kind = "mfma"; self.passes = MFMA_PASSES[op]
            self.wr = R[0]; self.A = R[1]; self.B = R[2]; self.C = R[3]; self.rd = R[1] | R[2] | R[3]
        elif op.startswith("v_"):
            self.kind = "valu"
            if op.startswith("v_cmp"):
                self.wr = R[0]; self.rd = U(R[1:])
            elif op.startswith("v_permlane") and "swap" in op:
                self.wr = R[0] | R[1]; self.rd = R[0] | R[1]
            elif op.startswith("v_fmac") or op.startswith("v_dot2c") or "UNUSED_PRESERVE" in mods or op.startswith("v_writelane"):
                self.wr = R[0]; self.rd = U(R)
            elif op in ("v_add_co_u32", "v_sub_co_u32", "v_addc_co_u32"):
                self.wr = R[0] | R[1]; self.rd = U(R[2:])
            elif op == "v_nop":
                pass
            else:
                self.wr = R[0]; self.rd = U(R[1:])
        elif op.startswith("ds_"):
            self.kind = "ds"
            if op.startswith("ds_read") or op.startswith("ds_bpermute") or op.startswith("ds_swizzle"):
                self.wr = R[0]; self.rd = U(R[1:])
            else:
                self.rd = U(R)
        elif op.startswith("buffer_") or op.startswith("global_"):
            self.kind = "vmem"
            if op in ("buffer_inv", "buffer_wbl2"):
                pass
            elif " lds" in (" " + mods) or "load_lds" in op:
                self.lds = True; self.rd = U(R) | regs_of("m0")
            elif "load" in op:
                self.wr = R[0]; self.rd = U(R[1:])
            elif "atomic" in op and "sc0" in mods:
                self.wr = R[0]; self.rd = U(R)
            else:
                self.rd = U(R)
        elif op.startswith("s_load") or op.startswith("s_memtime") or op.startswith("s_memrealtime") or op.startswith("s_buffer_load"):
            self.kind = "smem"; self.wr = R[0]; self.rd = U(R[1:])
        elif op == "s_nop":
            self.kind = "nop"; self.ws = int(ops[0], 0) + 1
        elif op == "s_waitcnt":
            self.kind = "wait"
        elif op.startswith("s_"):
            self.kind = "salu"
            if op.startswith(("s_cmp", "s_bitcmp", "s_barrier", "s_branch", "s_cbranch", "s_sleep", "s_setprio", "s_endpgm", "s_setpc")):
                self.rd = U(R)
            elif "saveexec" in op:
                self.wr = R[0] | regs_of("exec"); self.rd = U(R[1:]) | regs_of("exec")
            else:
                self.wr = R[0]; self.rd = U(R[1:])
                if op in ("s_addk_i32", "s_mulk_i32"): self.rd |= R[0]
        else:
            raise ValueError("unknown op " + text)

class Kern:
    def __init__(self, name):
        self.name = name
        self.lines = []
        self.nlabel = 0
    def e(self, s, *a):
        if a: s = s % a
        for l in s.strip("\n").split("\n"):
            l = l.strip()
            if l: self.lines.append(l)
    def c(self, s):
        self.lines.append("; " + s)
    def lab(self, base="L"):
        self.nlabel += 1
        return "%s_%s_%d" % (base, self.name[:6], self.nlabel)
    def label(self, l):
        self.lines.append(l + ":")
    def text(self):
        out = []
        for l in self.lines:
            if l.endswith(":") or l.startswith("."): out.append(l)
            else: out.append("    " + l)
        return "\n".join(out) + "\n"
    def maxregs(self):
        mv = ms = ma = -1
        for l in self.lines:
            if l.startswith(";") or l.endswith(":") or l.startswith("."): continue
            i = Ins(l)
            for k, n in i.wr | i.rd:
                if k == "v": mv = max(mv, n)
                elif k == "a": ma = max(ma, n)
                elif k == "s" and n < 102: ms = max(ms, n)
        return mv, ms, ma
    def check(self, verbose=True):
        errs = []
        hist = []
        pos = 0
        vm = []
        lg = []
        for ln, l in enumerate(self.lines):
            if l.startswith("; @vmdrop"):
                n = int(l.split()[2]); vm = vm[:len(vm) - n]; continue
            if l.startswith("; @lgkm"):
                lg = []; continue
            if l.startswith("; @reset"):
                vm = []; lg = []; hist = []; continue
            if l.startswith(";") or l.endswith(":") or l.startswith("."): continue
            i = Ins(l); i.line = ln
            vr = {r for r in i.rd if r[0] in "va"}; vw = {r for r in i.wr if r[0] in "va"}
            def need(p, n, why):
                d = pos - p[1] - p[0].ws + 0
                if d < n: errs.append("line %d: '%s' after '%s': %s needs %d, has %d" % (ln, l, p[0].text, why, n, d))
            for p in reversed(hist[-40:]):
                q = p[0]
                if q.kind == "valu":
                    qv = {r for r in q.wr if r[0] in "va"}; qs = {r for r in q.wr if r[0] == "s"}
                    if i.kind == "mfma" and qv & i.rd: need(p, 2, "VALU->MFMA")
                    if i.kind == "valu":
                        if q.op.startswith(TRANS) and not i.op.startswith(TRANS) and qv & i.rd: need(p, 1, "trans->VALU")
                        if i.op.startswith("v_permlane") and qv & i.rd: need(p, 2, "VALU->permlane")
                        if i.op.startswith(("v_readlane", "v_readfirstlane")) and qv & i.rd: need(p, 1, "VALU->readlane")
                        if "dpp" in l and qv & i.rd: need(p, 2, "VALU->DPP")
                        if qs & i.rd: need(p, 2, "VALU sgpr->VALU")
                        if ("sdwa" in q.text or "op_sel" in q.text) and qv & (i.rd | i.wr): need(p, 1, "opsel/sdwa->VALU")
                    if q.op.startswith(TRANS) and i.kind in ("ds", "vmem") and qv & i.rd: need(p, 1, "trans->mem")
                    if i.kind == "vmem" and qs & i.rd: need(p, 5, "VALU sgpr->VMEM")
                if q.kind == "mfma":
                    if i.kind == "mfma":
                        if q.wr & (i.A | i.B): need(p, D_TO_VALU[q.passes], "MFMA D->A/B")
                        if q.wr & i.C:
                            if q.wr == i.C and q.passes == i.passes: need(p, 2 if q.passes == 2 else 0, "MFMA chain")
                            else: need(p, D_TO_C_OVL[q.passes], "MFMA D->C overlap")
                        elif q.wr & i.wr: need(p, D_TO_C_OVL[q.passes], "MFMA WAW")
                    else:
                        if q.wr & (vr | vw): need(p, D_TO_VALU[q.passes], "MFMA D->use")
                        if i.kind == "valu" and (q.C & vw): need(p, C_WAR[q.passes], "MFMA C WAR")
                if q.kind == "salu" and ("s", 124) in q.wr and i.lds: need(p, 1, "M0->LDSDMA")
                if q.kind == "vmem" and "store" in q.op and ("x4" in q.op or "x3" in q.op):
                    data = regs_of(q.ops[0])
                    if data & vw and i.kind == "valu": need(p, 2, "store data WAR")
                    elif data & vw: need(p, 1, "store data WAR")
            if i.kind == "wait":
                m = re.search(r"vmcnt\((\d+)\)", l)
                if m:
                    n = int(m.group(1))
                    while len(vm) > n: vm.pop(0)
                m = re.search(r"lgkmcnt\((\d+)\)", l)
                if m:
                    n = int(m.group(1))
                    if n > 0 and any(s for _, s in lg): errs.append("line %d: counted lgkmcnt with SMEM outstanding" % ln)
                    while len(lg) > n: lg.pop(0)
            else:
                touched = i.rd | i.wr
                for d in vm:
                    if d & touched: errs.append("line %d: '%s' touches %s with VMEM load outstanding" % (ln, l, sorted(d & touched)[:2]))
                for d, _ in lg:
                    if d & touched: errs.append("line %d: '%s' touches %s with LGKM op outstanding" % (ln, l, sorted(d & touched)[:2]))
                if i.kind == "vmem":
                    vm.append(set(i.wr))
                    if len(vm) > 63: errs.append("line %d: >63 vmem outstanding" % ln)
                elif i.kind == "ds":
                    lg.append((set(i.wr), False))
                    if len(lg) > 15 and False: errs.append("line %d: >15 lgkm outstanding" % ln)
                elif i.kind == "smem": lg.append((set(i.wr), True))
            hist.append((i, pos))
            pos += i.ws
        if verbose:
            for e in errs[:50]: print("HAZARD[%s] %s" % (self.name, e))
        return errs

def vr(b, n=1):
    return "v%d" % b if n == 1 else "v[%d:%d]" % (b, b + n - 1)
def sr(b, n=1):
    return "s%d" % b if n == 1 else "s[%d:%d]" % (b, b + n - 1)

def srd(k, d, base, size):
    k.e("s_mov_b32 s%d, s%d" % (d, base))
    k.e("s_mov_b32 s%d, s%d" % (d + 1, base + 1))
    k.e("s_mov_b32 s%d, 0x%x" % (d + 2, size))
    k.e("s_mov_b32 s%d, 0x00020000" % (d + 3))

def kernel_text(k, extra_desc=""):
    mv, ms, ma = k.maxregs()
    nv = mv + 1
    acc = (nv + 3) // 4 * 4
    nfv = nv if ma < 0 else acc + ma + 1
    s = ".text\n.globl %s\n.p2align 8\n.type %s,@function\n%s:\n" % (k.name, k.name, k.name)
    s += k.text()
    s += "    s_endpgm\n"
    d = ".section .rodata,\"a\"\n.p2align 6\n.amdhsa_kernel %s\n" % k.name
    d += "  .amdhsa_next_free_vgpr %d\n  .amdhsa_next_free_sgpr %d\n  .amdhsa_accum_offset %d\n" % (nfv, min(102, ms + 1), acc)
    d += "  .amdhsa_group_segment_fixed_size 0\n  .amdhsa_kernarg_size 72\n  .amdhsa_user_sgpr_count 2\n  .amdhsa_user_sgpr_kernarg_segment_ptr 1\n  .amdhsa_system_sgpr_workgroup_id_x 1\n"
    d += extra_desc
    d += ".end_amdhsa_kernel\n"
    return s, d

class Stamps:
    def __init__(self, k, base=74, maxn=26, enabled=False, real=False):
        self.k = k; self.base = base; self.n = 0; self.maxn = maxn; self.on = enabled; self.names = []; self.real = real
    def stamp(self, name):
        if not self.on: return
        if name in self.names: i = self.names.index(name)
        else:
            i = self.n; self.names.append(name); self.n += 1
        assert i < self.maxn
        self.k.e("%s s[100:101]" % ("s_memrealtime" if self.real else "s_memtime"))
        self.k.e("s_waitcnt lgkmcnt(0)")
        self.k.e("s_mov_b32 s%d, s100" % (self.base + i))
    def dump(self, srd_ws, off, vt=1, waves=8):
        if not self.on: return
        k = self.k
        k.e("s_waitcnt vmcnt(0) lgkmcnt(0)")
        self.stamp("end")
        k.e("v_lshrrev_b32 v%d, 6, v0" % vt)
        k.e("s_mul_i32 s3, s2, %d" % waves)
        k.e("v_add_u32 v%d, s3, v%d" % (vt, vt))
        k.e("v_lshlrev_b32 v%d, 7, v%d" % (vt, vt))
        k.e("v_add_u32 v%d, 0x%x, v%d" % (vt, off, vt))
        for i in range(self.n):
            k.e("v_mov_b32 v%d, s%d" % (vt + 1, self.base + i))
            k.e("buffer_store_dword v%d, v%d, s[%d:%d], 0 offen offset:%d" % (vt + 1, vt, srd_ws, srd_ws + 3, 4 * i))
            k.e("s_nop 0")

import struct
def f32(x): return "0x%08x" % struct.unpack("<I", struct.pack("<f", x))[0]

class VM:
    def __init__(self): self.q = []
    def add(self, tag): self.q.append(tag)
    def n_after(self, tag):
        idx = max(i for i, t in enumerate(self.q) if t == tag)
        return len(self.q) - 1 - idx
```
